```python
import torch

def _softmax(x, axis=-1):
    return torch.softmax(x, dim=axis)

def _gelu(x):
    return torch.nn.functional.gelu(x, approximate='tanh')

def _silu(x):
    return torch.nn.functional.silu(x)

def _sigmoid(x):
    return torch.sigmoid(x)

def _layernorm(x, axis=-1, eps=1e-05):
    m = x.mean(dim=axis, keepdim=True)
    v = x.var(dim=axis, keepdim=True, unbiased=False)
    return (x - m) / torch.sqrt(v + eps)

def _scatter_add(tgt, idx, src, axis=0):
    return tgt.clone().index_add_(axis, idx, src)

def _segment_sum(src, seg, n):
    out = torch.zeros((n,) + src.shape[1:], dtype=src.dtype)
    return out.index_add_(0, seg, src)

def _pad(x, pw):
    flat = tuple((v for pair in reversed(pw) for v in pair))
    return torch.nn.functional.pad(x, flat)
kernel_name = 'adaLN_cond__mha_block_cached__mixer_s_mlp__prompt'

def setup_inputs():

    _w = lambda a: (lambda t: t.to(torch.bfloat16) if t.is_floating_point() else t)(torch.as_tensor(a))

    def _A_setup():
        B, Sq, D = (1, 2048, 640)
        H, Sk, Dh = (32, 2048, 192)
        return {'x': _w((lambda *s: torch.randn(*s, dtype=torch.bfloat16) * 0.1)(B, Sq, D)), 'k_cache': _w((lambda *s: torch.randn(*s, dtype=torch.bfloat16) * 0.8)(B, H, Sk, Dh)), 'v_cache': _w((lambda *s: torch.randn(*s, dtype=torch.bfloat16) * 0.8)(B, H, Sk, Dh)), 'wq': _w((lambda *s: torch.randn(*s, dtype=torch.bfloat16) * 0.8)(D, H * Dh) * D ** (-0.5)), 'wo': _w((lambda *s: torch.randn(*s, dtype=torch.bfloat16) * 0.8)(H * Dh, D) * (H * Dh) ** (-0.5))}
    _A_in = _A_setup()

    def _B_setup():
        B, S, D, F = (1, 2048, 640, 1536)
        return {'x': _w((lambda *s: torch.randn(*s, dtype=torch.bfloat16) * 0.1)(B, S, D)), 'w1': _w((lambda *s: torch.randn(*s, dtype=torch.bfloat16) * 3.2)(D, D) * D ** (-0.5)), 'w2': _w((lambda *s: torch.randn(*s, dtype=torch.bfloat16) * 3.2)(D, D) * D ** (-0.5)), 'w3': _w((lambda *s: torch.randn(*s, dtype=torch.bfloat16) * 3.2)(D, F) * D ** (-0.5)), 'w4': _w((lambda *s: torch.randn(*s, dtype=torch.bfloat16) * 3.2)(F, D) * F ** (-0.5))}
    _B_in = _B_setup()
    return {'A_x': _A_in['x'], 'A_k_cache': _A_in['k_cache'], 'A_v_cache': _A_in['v_cache'], 'A_wq': _A_in['wq'], 'A_wo': _A_in['wo'], 'B_x': _B_in['x'], 'B_w1': _B_in['w1'], 'B_w2': _B_in['w2'], 'B_w3': _B_in['w3'], 'B_w4': _B_in['w4'], 'c': _w((lambda *s: torch.randn(*s, dtype=torch.bfloat16) * 0.2)(1, 640) * 8.0), 'w_mod': _w((lambda *s: torch.randn(*s, dtype=torch.bfloat16) * 0.2)(640, 6 * 640) * 640 ** (-0.5) * 8.0)}

def reference(A_x, A_k_cache, A_v_cache, A_wq, A_wo, B_x, B_w1, B_w2, B_w3, B_w4, c, w_mod):

    def _A_ref(x, k_cache, v_cache, wq, wo):
        B, Sq, D = x.shape
        H, Dh = (32, 192)
        q = (lambda x, *d: x.permute(*d))((x @ wq).reshape(B, Sq, H, Dh), 0, 2, 1, 3)
        scores = torch.einsum('bhqd,bhkd->bhqk', q, k_cache) * Dh ** (-0.5)
        p = _softmax(scores, axis=-1)
        o = torch.einsum('bhqk,bhkd->bhqd', p, v_cache)
        return (lambda x, *d: x.permute(*d))(o, 0, 2, 1, 3).reshape(B, Sq, H * Dh) @ wo

    def _B_ref(x, w1, w2, w3, w4):
        B, S, D = x.shape
        h = _gelu(_layernorm(x, axis=-1) @ w1)
        c = D // 4
        g0 = _pad(h[:, :, 0 * c:1 * c], ((0, 0), (1, 0), (0, 0)))[:, :S, :]
        g1 = _pad(h[:, :, 1 * c:2 * c], ((0, 0), (0, 1), (0, 0)))[:, 1:, :]
        g2 = _pad(h[:, :, 2 * c:3 * c], ((0, 0), (2, 0), (0, 0)))[:, :S, :]
        g3 = _pad(h[:, :, 3 * c:], ((0, 0), (0, 2), (0, 0)))[:, 2:, :]
        hs = torch.concatenate([g0, g1, g2, g3], axis=-1) @ w2
        x1 = x + hs
        h2 = _gelu(_layernorm(x1, axis=-1) @ w3) @ w4
        return x1 + h2
    x = A_x
    mod = (_silu(c) @ w_mod).reshape(c.shape[0], 6, 1, -1)
    sa, ca, ga, sb, cb, gb = (mod[:, 0].clone(), mod[:, 1].clone(), mod[:, 2].clone(), mod[:, 3].clone(), mod[:, 4].clone(), mod[:, 5].clone())
    h = _layernorm(x, axis=-1) * (1 + ca) + sa
    x = x + ga * _A_ref(h, A_k_cache, A_v_cache, A_wq, A_wo)
    h = _layernorm(x, axis=-1) * (1 + cb) + sb
    x = x + gb * _B_ref(h, B_w1, B_w2, B_w3, B_w4)
    return x
```

```python
import re

REG_RE = re.compile(r'(?<![\w.])([vas])(?:\[(\d+):(\d+)\]|(\d+))(?![\w])')

def regs_of(op):
    out = []
    for m in REG_RE.finditer(op):
        k = m.group(1)
        if m.group(2) is not None:
            out += [(k, i) for i in range(int(m.group(2)), int(m.group(3)) + 1)]
        else:
            out.append((k, int(m.group(4))))
    if re.search(r'\bvcc\b', op): out += [('s', 106), ('s', 107)]
    if re.search(r'\bm0\b', op): out.append(('s', 124))
    if re.search(r'\bexec\b', op): out += [('s', 126), ('s', 127)]
    return out

TRANS = ('v_exp_f32', 'v_log_f32', 'v_rcp_f32', 'v_rsq_f32', 'v_sqrt_f32', 'v_sin_f32', 'v_cos_f32')

def split_ops(s):
    ops, depth, cur = [], 0, ''
    for ch in s:
        if ch == '[': depth += 1
        if ch == ']': depth -= 1
        if ch == ',' and depth == 0:
            ops.append(cur.strip()); cur = ''
        else:
            cur += ch
    if cur.strip(): ops.append(cur.strip())
    return ops

class Ins:
    __slots__ = ('text', 'tag', 'kind', 'op', 'dst', 'src', 'srcC', 'states', 'passes', 'wait', 'lds_dma', 'wide_store')
    def __init__(self, text, tag=None):
        self.text = text; self.tag = tag; self.wait = None
        self.parse()
    def parse(self):
        t = self.text.split(';')[0].strip()
        self.dst = []; self.src = []; self.srcC = []; self.states = 1; self.passes = 0
        self.lds_dma = False; self.wide_store = False
        if not t or t.startswith('.') or t.endswith(':'):
            self.kind = 'none'; self.op = t; self.states = 0; return
        parts = t.split(None, 1)
        op = parts[0]; self.op = op
        rest = parts[1] if len(parts) > 1 else ''
        ops = split_ops(rest)
        R = regs_of
        if op.startswith('v_mfma'):
            self.kind = 'mfma'; self.dst = R(ops[0]); self.src = R(ops[1]) + R(ops[2]); self.srcC = R(ops[3])
            self.passes = 8 if '32x32' in op else 4
        elif op.startswith('ds_'):
            self.kind = 'ds'
            if op.startswith('ds_read') or op.startswith('ds_bpermute') or op.startswith('ds_swizzle'):
                self.dst = R(ops[0]); self.src = sum((R(o) for o in ops[1:]), [])
            else:
                self.src = sum((R(o) for o in ops), [])
        elif op.startswith('buffer_') or op.startswith('global_'):
            self.kind = 'vm'
            if op in ('buffer_inv', 'buffer_wbl2'):
                pass
            elif re.search(r'\blds\b', rest) or 'load_lds' in op:
                self.lds_dma = True; self.src = sum((R(o) for o in ops), []) + [('s', 124)]
            elif 'load' in op:
                self.dst = R(ops[0]); self.src = sum((R(o) for o in ops[1:]), [])
            elif 'atomic' in op and ' sc0' in rest:
                if op.startswith('buffer_'):
                    self.dst = R(ops[0]); self.src = sum((R(o) for o in ops), [])
                else:
                    self.dst = R(ops[0]); self.src = sum((R(o) for o in ops[1:]), [])
            else:
                self.src = sum((R(o) for o in ops), [])
                if 'x4' in op or 'x3' in op:
                    self.wide_store = R(ops[0]) if op.startswith('buffer_') else R(ops[1])
        elif op.startswith('s_'):
            if op.startswith('s_load') or op in ('s_memtime', 's_memrealtime'):
                self.kind = 'smem'; self.dst = R(ops[0]); self.src = sum((R(o) for o in ops[1:]), [])
            elif op == 's_nop':
                self.kind = 'nop'; self.states = int(ops[0], 0) + 1
            elif op == 's_waitcnt':
                self.kind = 'wait'
            elif op in ('s_barrier', 's_endpgm', 's_setprio', 's_sleep') or op.startswith('s_cbranch') or op == 's_branch':
                self.kind = 'ctl'
            elif op.startswith('s_cmp') or op.startswith('s_bitcmp'):
                self.kind = 'salu'; self.src = sum((R(o) for o in ops), [])
            else:
                self.kind = 'salu'; self.dst = R(ops[0]); self.src = sum((R(o) for o in ops[1:]), [])
                if 'saveexec' in op: self.dst += [('s', 126), ('s', 127)]
                if op in ('s_addk_i32', 's_mulk_i32', 's_cmov_b32', 's_cmov_b64'): self.src += self.dst
        elif op.startswith('v_'):
            self.kind = 'valu'
            base = op.replace('_e32', '').replace('_e64', '').replace('_dpp', '')
            if base.startswith('v_cmp'):
                self.dst = R(ops[0]); self.src = sum((R(o) for o in ops[1:]), [])
                if base.startswith('v_cmpx'): self.dst += [('s', 126), ('s', 127)]
            elif base in ('v_add_co_u32', 'v_addc_co_u32', 'v_sub_co_u32', 'v_subb_co_u32', 'v_div_scale_f32', 'v_mad_u64_u32'):
                self.dst = R(ops[0]) + R(ops[1]); self.src = sum((R(o) for o in ops[2:]), [])
            elif base.startswith('v_permlane') and 'swap' in base:
                self.dst = R(ops[0]) + R(ops[1]); self.src = list(self.dst)
            elif base == 'v_nop':
                pass
            else:
                self.dst = R(ops[0]); self.src = sum((R(o) for o in ops[1:]), [])
                if base in ('v_fmac_f32', 'v_pk_fmac_f16', 'v_dot2c_f32_bf16', 'v_writelane_b32') or 'dpp' in op or 'row_' in rest or 'quad_perm' in rest:
                    self.src += self.dst
                if base == 'v_div_fmas_f32': self.src += [('s', 106), ('s', 107)]
        else:
            raise ValueError('unparsed: ' + t)
    def is_trans(self): return self.op.replace('_e32', '').replace('_e64', '') in TRANS
    def is_dpp(self): return 'dpp' in self.op or 'row_' in self.text or 'quad_perm' in self.text

class Stream:
    def __init__(self):
        self.ins = []
    def __call__(self, text, tag=None):
        for line in text.split('\n'):
            line = line.strip()
            if line: self.ins.append(Ins(line, tag))
    def mark(self, name):
        i = Ins('; MARK ' + name); i.kind = 'mark'; i.op = name; self.ins.append(i)
    def wait(self, vm=None, lg=None):
        i = Ins('s_waitcnt ?'); i.wait = (vm, lg); self.ins.append(i)
    def extend(self, other): self.ins += other.ins

    def resolve(self):
        vm_seq, lg_seq = [], []
        for i in self.ins:
            if i.wait is not None:
                vm, lg = i.wait
                parts = []
                def cnt(seq, tags, mx):
                    if isinstance(tags, int): return tags
                    if not isinstance(tags, (list, set)): tags = [tags]
                    last = -1
                    for t in tags:
                        idx = [k for k, x in enumerate(seq) if x == t]
                        assert idx, 'wait on unknown tag %r' % (t,)
                        last = max(last, idx[-1])
                    return min(len(seq) - 1 - last, mx)
                if vm is not None: parts.append('vmcnt(%d)' % cnt(vm_seq, vm, 63))
                if lg is not None: parts.append('lgkmcnt(%d)' % cnt(lg_seq, lg, 15))
                i.text = 's_waitcnt ' + ' '.join(parts); i.wait = None
                i.parse()
            elif i.kind == 'vm': vm_seq.append(i.tag)
            elif i.kind == 'ds': lg_seq.append(i.tag)
            elif i.kind == 'smem' and i.tag != 'stamp': lg_seq.append('smem'); lg_seq.append('smem')
        return self

    def check(self, name=''):
        errs = []
        seq = [i for i in self.ins if i.kind not in ('none', 'mark')]
        vmq, lgq = [], []
        n = len(seq)
        for k, c in enumerate(seq):
            touched = set(c.src) | set(c.dst) | set(c.srcC)
            if c.kind == 'wait':
                m = re.search(r'vmcnt\((\d+)\)', c.text)
                if m:
                    N = int(m.group(1)); vmq = vmq[len(vmq) - N:] if N < len(vmq) and N > 0 else ([] if N == 0 else vmq)
                m = re.search(r'lgkmcnt\((\d+)\)', c.text)
                if m:
                    N = int(m.group(1))
                    if N == 0: lgq = []
                    elif not any(x[1] for x in lgq) and N < len(lgq): lgq = lgq[len(lgq) - N:]
                continue
            for q, nm in ((vmq, 'vm'), (lgq, 'lgkm')):
                for x in q:
                    if touched & x[0]:
                        errs.append('%s: pending %s load regs %s touched by [%s] (load: %s)' % (name, nm, sorted(touched & x[0])[:4], c.text, x[2]))
            if c.kind == 'vm':
                vmq.append((set(c.dst), False, c.text))
                if len(vmq) > 63: errs.append('%s: vmcnt overflow at %s' % (name, c.text))
            if c.kind == 'ds': lgq.append((set(c.dst), False, c.text))
            if c.kind == 'smem' and c.tag != 'stamp': lgq.append((set(c.dst), True, c.text))
            dist = 0
            j = k - 1
            while j >= 0 and dist < 20:
                p = seq[j]
                need = hazard(p, c)
                if need > dist:
                    errs.append('%s: hazard need %d have %d: [%s] -> [%s]' % (name, need, dist, p.text, c.text))
                dist += p.states
                j -= 1
        return errs

    def autonop(self):
        out = []; n = 0
        for c in self.ins:
            if c.kind not in ('none', 'mark', 'wait', 'nop'):
                dist = 0; short = 0
                for p in reversed(out):
                    if dist >= 20: break
                    if p.kind in ('none', 'mark'): continue
                    short = max(short, hazard(p, c) - dist)
                    dist += p.states
                if short > 0:
                    out.append(Ins('s_nop %d' % (short - 1))); n += 1
            out.append(c)
        self.ins = out
        return n

    def text(self):
        return '\n'.join(('    ' + i.text if i.kind not in ('none',) else i.text) for i in self.ins if i.kind != 'mark') + '\n'

def vregs(l): return {r for r in l if r[0] in 'va'}
def sregs(l): return {r for r in l if r[0] == 's'}

def hazard(p, c):
    need = 0
    pd = set(p.dst)
    if p.kind == 'valu':
        pv, ps = vregs(pd), sregs(pd)
        if c.kind == 'mfma' and pv & (set(c.src) | set(c.srcC)): need = max(need, 2)
        if c.kind == 'valu':
            if p.is_trans() and not c.is_trans() and pv & set(c.src): need = max(need, 1)
            if c.op.startswith('v_permlane') and pv & set(c.src): need = max(need, 2)
            if c.is_dpp() and pv & set(c.src): need = max(need, 2)
            if (c.op.startswith('v_readlane') or c.op.startswith('v_readfirstlane')) and pv & set(c.src): need = max(need, 1)
            if ps & set(c.src): need = max(need, 4 if ('lane' in c.op or 'div_fmas' in c.op) else 2)
            if ('s', 126) in ps:
                if c.is_dpp(): need = max(need, 5)
                if 'lane' in c.op: need = max(need, 4)
        if c.kind == 'vm' and ps & set(c.src): need = max(need, 5)
        if c.kind == 'mfma' and ('s', 126) in ps: need = max(need, 4)
        if c.kind in ('salu', 'smem') and ps & set(c.src): need = max(need, 1)
    if p.kind == 'mfma':
        t = {8: (12, 10, 7), 4: (8, 6, 3)}[p.passes]
        if c.kind == 'mfma':
            if pd & set(c.src): need = max(need, t[0])
            if pd & set(c.srcC) and not (set(c.srcC) == pd and c.passes == p.passes): need = max(need, t[1])
            if pd & set(c.dst) and set(c.srcC) != pd: need = max(need, t[1])
        elif c.kind in ('valu', 'vm', 'ds'):
            if pd & (set(c.src) | set(c.dst)): need = max(need, t[0])
            if c.kind == 'valu' and set(p.srcC) & set(c.dst): need = max(need, t[2])
    if p.kind == 'salu' and ('s', 124) in pd and (c.lds_dma or 'addtid' in c.op): need = max(need, 1)
    if p.kind == 'vm' and p.wide_store and set(p.wide_store) & set(c.dst):
        need = max(need, 2 if c.kind in ('valu', 'mfma') else 1)
    return need

def fold(stream, groups):
    pos = {i.op: k for k, i in enumerate(stream.ins) if i.kind == 'mark'}
    def body(a, b): return [i.text for i in stream.ins[pos[a]:pos[b]] if i.kind != 'mark']
    ref = body(*groups[0])
    for g in groups[1:]:
        x = body(*g)
        if x != ref:
            for u, v in zip(ref, x):
                if u != v: raise AssertionError('fold mismatch %s: %s vs %s' % (g, u, v))
            raise AssertionError('fold length mismatch %s %d %d' % (g, len(ref), len(x)))
    return pos

def v(a, n=1): return 'v%d' % a if n == 1 else 'v[%d:%d]' % (a, a + n - 1)
def a(a_, n=1): return 'a%d' % a_ if n == 1 else 'a[%d:%d]' % (a_, a_ + n - 1)
def s(a_, n=1): return 's%d' % a_ if n == 1 else 's[%d:%d]' % (a_, a_ + n - 1)

def kernel_head(name):
    return '.globl %s\n.p2align 8\n.type %s,@function\n%s:\n' % (name, name, name)

def kernel_desc(name, vgpr, accum, sgpr=96):
    return ('.amdhsa_kernel %s\n  .amdhsa_next_free_vgpr %d\n  .amdhsa_next_free_sgpr %d\n  .amdhsa_accum_offset %d\n'
            '  .amdhsa_group_segment_fixed_size 0\n  .amdhsa_kernarg_size 120\n  .amdhsa_user_sgpr_count 2\n'
            '  .amdhsa_user_sgpr_kernarg_segment_ptr 1\n  .amdhsa_system_sgpr_workgroup_id_x 1\n'
            '.end_amdhsa_kernel\n' % (name, vgpr, sgpr, accum))
```

```python
from asmlib import *
from layout import *

TILE = 12288
SLOT = 2 * TILE
KSLOT = [0, SLOT, 2 * SLOT]
VSLOT = [3 * SLOT, 4 * SLOT, 5 * SLOT]
FLAG_OFF = 6 * SLOT
LDS_BYTES = 6 * SLOT + 64
RING = [VSLOT[0], KSLOT[2], VSLOT[1], VSLOT[2], KSLOT[0], KSLOT[1]]

V_S = 96; V_TMP16 = 112; V_P = 128; V_NEGM = 192
V_WA = 192; V_OFFW = 198; V_HOFF = 201
V_KA = 208; V_VA = 210; V_KA0 = 214; V_VA0 = 216
V_OFFK = 220; V_OFFV = 223
V_L = 226; V_M = 230; V_L16 = 234; V_L16B = 235; V_T = 236
A_KF = 192; A_VF = 216
S_K, S_V, S_W, S_H, S_O = 4, 8, 12, 16, 20
S_WAVE, S_WB, S_KOFF, S_VOFF, S_CNT, S_PASS, S_WOFF, S_HOFF = 24, 25, 26, 27, 28, 29, 30, 31
S_KR, S_KD, S_VR, S_VD = 44, 45, 46, 47
S_ST = 40
S_TS = 60

def QA(db, qb): return (((db >> 1) * 4 + qb) * 2 + (db & 1)) * 4
def Q(qb, ks): return (ks * 4 + qb) * 4
def OA(db, qb): return (db * 4 + qb) * 4
def SR(qb): return V_S + 4 * qb
def P(pb, kh, qb): return V_P + ((pb * 2 + kh) * 4 + qb) * 4
MF = 'v_mfma_f32_16x16x32_bf16'

def dma_tile(kind, m0expr, tag, wrap=0):
    srd, off, vo, step = {'K': (S_K, S_KOFF, V_OFFK, TILE), 'V': (S_V, S_VOFF, V_OFFV, TILE), 'W': (S_W, S_WOFF, V_OFFW, 32 * 12288)}[kind]
    m0 = ('s_add_u32 m0, %s, %d' % m0expr, None)
    lds = [('buffer_load_dwordx4 %s, %s, %s offen offset:%d lds' % (v(vo + i), s(srd, 4), s(off), 1024 * i), tag) for i in range(3)]
    adv = ('s_add_u32 %s, %s, %d' % (s(off), s(off), step), None)
    if wrap: adv = (adv[0] + '\ns_cmp_eq_u32 %s, %d\ns_cmov_b32 %s, 0' % (s(off), wrap, s(off)), None)
    return m0, lds, adv

def put(S, x):
    if x is None: return
    if x[0] == 'WAIT': S.wait(vm=x[1], lg=x[2])
    elif x[0] == 'MARK': S.mark(x[1])
    else: S(x[0], x[1])

def put_tile(S, t):
    put(S, t[0]); S('s_nop 0')
    for x in t[1]: put(S, x)
    put(S, t[2])

class Gaps:
    def __init__(self, n, base=0, budget=8):
        self.n = n; self.base = base; self.budget = budget
        self.mf = [None] * n; self.first = [None] * n; self.rest = [[] for _ in range(n)]; self.cost = [0] * n
        self.mark = {}
    def fits(self, g, cost, mem):
        i = g - self.base
        if mem and self.first[i] is not None: return False
        return self.cost[i] + cost <= self.budget
    def add(self, g, items, cost, mem=False):
        i = g - self.base
        if not isinstance(items, list): items = [items]
        if mem:
            assert self.first[i] is None, ('two memory ops in gap', g)
            self.first[i] = items[0]; items = items[1:]
        self.rest[i] += items; self.cost[i] += cost
    def place(self, items, lo, hi, cost=4, mem=False, half=0):
        for g in range(lo, min(hi, lo + half) + 1):
            if half and self.cost[g - self.base] > 0 and self.fits(g, cost, mem):
                self.add(g, items, cost, mem); return g
        for g in range(lo, hi + 1):
            if self.fits(g, cost, mem):
                self.add(g, items, cost, mem); return g
        raise AssertionError('no slot for %s in [%d,%d]' % (items, lo, hi))
    def emit(self, S, lo=None, hi=None):
        for g in range(self.base if lo is None else lo, self.base + self.n if hi is None else hi):
            i = g - self.base
            if g in self.mark: S.mark(self.mark[g])
            if self.mf[i]: S(self.mf[i])
            elif self.rest[i] or self.first[i]: S('s_nop 0')
            put(S, self.first[i])
            for x in self.rest[i]: put(S, x)

def gen(stamp=False, thr=0x53800000, opts=None):
    opts = opts or {}
    S = Stream()
    name = 'attn_kernel'
    S('s_cmp_ge_u32 s2, 256\ns_cbranch_scc1 L_attn_end')
    if stamp: S('s_memtime %s' % s(S_TS, 2)); S('s_memrealtime %s' % s(S_TS + 14, 2))
    S('s_load_dwordx4 s[32:35], s[0:1], %d' % KARG['k'])
    S('s_load_dwordx2 s[36:37], s[0:1], %d' % KARG['wq'])
    S('s_load_dwordx2 s[38:39], s[0:1], %d' % KARG['ws'])
    T = V_T
    S('v_lshrrev_b32 %s, 6, v0' % v(T))
    S('v_and_b32 %s, 63, v0' % v(T + 1))
    S('v_readfirstlane_b32 %s, %s' % (s(S_WAVE), v(T)))
    L = T + 1
    S('v_lshlrev_b32 %s, 4, %s' % (v(V_L16), v(L)))
    S('s_and_b32 s3, s2, 7\ns_lshl_b32 s3, s3, 2\ns_lshr_b32 s50, s2, 3\ns_and_b32 s51, s50, 3\ns_add_u32 s3, s3, s51\ns_lshr_b32 s50, s50, 2')
    S('s_mul_i32 %s, %s, 3072' % (s(S_WB), s(S_WAVE)))
    S('s_lshl_b32 s52, %s, 3' % s(S_WAVE))
    rows = []
    for i in range(3):
        n, p, c = T + 2, T + 4 + 2 * i, T + 3
        r = T + 5 + 2 * i
        S('v_add_u32 %s, %d, %s' % (v(n), 64 * i, v(L)))
        S('v_mul_u32_u24 %s, 2731, %s' % (v(r), v(n)))
        S('v_lshrrev_b32 %s, 16, %s' % (v(r), v(r)))
        S('v_mul_u32_u24 %s, 24, %s' % (v(p), v(r)))
        S('v_sub_u32 %s, %s, %s' % (v(p), v(n), v(p)))
        S('v_add_u32 %s, s52, %s' % (v(r), v(r)))
        S('v_bfe_u32 %s, %s, 1, 1' % (v(c), v(r)))
        S('v_lshlrev_b32 %s, 2, %s' % (v(c), v(c)))
        S('v_xor_b32 %s, %s, %s' % (v(c), v(c), v(p)))
        S('v_lshlrev_b32 %s, 4, %s' % (v(c), v(c)))
        S('v_subrev_u32 %s, %d, %s' % (v(c), 1024 * i, v(c)))
        S('v_mul_u32_u24 %s, 12288, %s' % (v(n), v(r)))
        S('v_add_u32 %s, %s, %s' % (v(V_OFFW + i), v(n), v(c)))
        rows.append((r, p))
    for qb in range(4): S('v_add_u32 %s, %d, %s' % (v(V_HOFF + qb), qb * 20480, v(V_L16)))
    S('s_waitcnt lgkmcnt(0)')
    S('s_mul_i32 s51, s3, 384')
    S('s_add_u32 %s, s36, s51\ns_addc_u32 %s, s37, 0\ns_sub_u32 %s, %d, s51\ns_mov_b32 %s, 0x20000' % (s(S_W), s(S_W + 1), s(S_W + 2), 640 * 12288, s(S_W + 3)))
    S('s_lshl_b32 s52, s50, 2\ns_add_u32 s52, s52, %s\ns_lshl_b32 s52, s52, 2' % s(S_WAVE))
    S('s_mul_i32 s51, s52, 20480\ns_add_u32 s51, s51, %d' % WS_H)
    S('s_add_u32 %s, s38, s51\ns_addc_u32 %s, s39, 0\ns_mov_b32 %s, 81920\ns_mov_b32 %s, 0x20000' % (s(S_H), s(S_H + 1), s(S_H + 2), s(S_H + 3)))
    S('s_mov_b32 %s, 0\ns_mov_b32 %s, 0\ns_mov_b32 %s, 0\ns_mov_b32 %s, 0\ns_mov_b32 %s, 0' % (s(S_WOFF), s(S_KOFF), s(S_VOFF), s(S_PASS), s(S_HOFF)))
    sg = opts.get('stag')
    if sg:
        S('s_lshr_b32 s51, s2, 3\ns_and_b32 s51, s51, 3')
        if sg == 5:
            S('s_add_u32 s51, s51, s50\ns_mul_i32 s53, s51, 52\ns_lshr_b32 s53, s53, 8\ns_mul_i32 s53, s53, 5\ns_sub_u32 s51, s51, s53')
        elif sg == 2:
            S('s_add_u32 s51, s51, s50\ns_and_b32 s51, s51, 1\ns_mul_i32 s51, s51, %d' % opts.get('stagd', 2))
        elif sg == 3:
            S('s_add_u32 s51, s51, s50\ns_mul_i32 s53, s51, 86\ns_lshr_b32 s53, s53, 8\ns_mul_i32 s53, s53, 3\ns_sub_u32 s51, s51, s53\ns_lshl_b32 s51, s51, 1\ns_min_u32 s51, s51, 3')
        S('s_mul_i32 %s, s51, %d\ns_lshl_b32 %s, s51, 12' % (s(S_WOFF), 128 * 12288, s(S_HOFF)))

    def hreg(st, ks, qb): return ((st % 6) * 8 + ks * 4 + qb) * 4
    def hloads(st):
        g = [('buffer_load_dwordx4 %s, %s, %s, %s offen offset:%d' % (a(hreg(st, ks, qb), 4), v(V_HOFF + qb), s(S_H, 4), s(S_HOFF), 1024 * ((st & 1) * 2 + ks)), ('H', st))
             for ks in range(2) for qb in range(4)]
        if opts.get('noh'): g = g[:1]
        adv = ('s_add_u32 %s, %s, 4096' % (s(S_HOFF), s(S_HOFF)), None) if st & 1 else None
        if adv and opts.get('stag'): adv = (adv[0] + '\ns_cmp_eq_u32 %s, 20480\ns_cmov_b32 %s, 0' % (s(S_HOFF), s(S_HOFF)), None)
        return (None, g, adv)
    def elem(e):
        base = RING[e % 6]
        kind, tag = ('W', ('E', e)) if e < 10 else {10: ('K', ('K', 0)), 11: ('K', ('K', 1)), 12: ('V', ('V', 0)), 13: ('K', ('K', 2)), 14: ('V', ('V', 1))}[e]
        r_ = [dma_tile(kind, (s(S_WB), base + h * TILE), tag, wrap=(640 * 12288 if (e < 9 and e % 2 == 1 and h == 1 and opts.get('stag')) else 0)) for h in range(2)]
        if opts.get('now') and e < 10: r_ = [(r_[0][0], r_[0][1][:1], r_[0][2])]
        return r_
    def burst(ts):
        for t in ts:
            if t[0] is not None: put(S, t[0]); S('s_nop 0')
            for x in t[1]: put(S, x)
            put(S, t[2])
    NB = opts.get('burst', 1)
    for e in range(NB): burst(elem(e) + [hloads(e)])
    if opts.get('codepf', True):
        S('s_getpc_b64 s[54:55]\nL_attn_pc:')
        S('v_lshlrev_b32 %s, 6, v0' % v(T + 2))
        for i in range(3):
            S('v_min_u32 %s, L_attn_end-L_attn_pc, %s' % (v(T + 3), v(T + 2)))
            S('global_load_dword %s, %s, s[54:55]' % (v(T + 16 + i), v(T + 3)), tag='code')
            if i < 2: S('v_add_u32 %s, 16384, %s' % (v(T + 2), v(T + 2)))
    S('s_mul_i32 s51, s3, 786432')
    S('s_add_u32 %s, s32, s51\ns_addc_u32 %s, s33, 0\ns_mov_b32 %s, 786432\ns_mov_b32 %s, 0x20000' % (s(S_K), s(S_K + 1), s(S_K + 2), s(S_K + 3)))
    S('s_add_u32 %s, s34, s51\ns_addc_u32 %s, s35, 0\ns_mov_b32 %s, 786432\ns_mov_b32 %s, 0x20000' % (s(S_V), s(S_V + 1), s(S_V + 2), s(S_V + 3)))
    S('s_mul_i32 s51, s52, %d\ns_mul_i32 s53, s3, 6144\ns_add_u32 s51, s51, s53\ns_add_u32 s51, s51, %d' % (192 * 1024, WS_O))
    S('s_add_u32 %s, s38, s51\ns_addc_u32 %s, s39, 0\ns_mov_b32 %s, %d\ns_mov_b32 %s, 0x20000' % (s(S_O), s(S_O + 1), s(S_O + 2), 3 * 192 * 1024 + 6144, s(S_O + 3)))
    if stamp:
        S('s_add_u32 %s, s38, %d\ns_addc_u32 %s, s39, 0\ns_mov_b32 %s, 0x100000\ns_mov_b32 %s, 0x20000' % (s(S_ST), WS_STAMP, s(S_ST + 1), s(S_ST + 2), s(S_ST + 3)))
    for i, (r, p) in enumerate(rows):
        n, c = T + 2, T + 3
        S('v_mul_u32_u24 %s, 384, %s' % (v(n), v(r)))
        S('v_subrev_u32 %s, %d, %s' % (v(n), 1024 * i, v(n)))
        S('v_bfe_u32 %s, %s, 1, 2' % (v(c), v(r)))
        S('v_lshlrev_b32 %s, 1, %s' % (v(c), v(c)))
        S('v_xor_b32 %s, %s, %s' % (v(c), v(c), v(p)))
        S('v_lshl_add_u32 %s, %s, 4, %s' % (v(V_OFFV + i), v(c), v(n)))
        S('v_bfe_u32 %s, %s, 1, 3' % (v(c), v(r)))
        S('v_xor_b32 %s, %s, %s' % (v(c), v(c), v(p)))
        S('v_lshl_add_u32 %s, %s, 4, %s' % (v(V_OFFK + i), v(c), v(n)))
    S('v_add_u32 %s, 4096, %s' % (v(V_L16B), v(V_L16)))
    key, g_, f, t = T + 2, T + 3, T + 4, T + 5
    S('v_and_b32 %s, 15, %s' % (v(key), v(L)))
    S('v_lshrrev_b32 %s, 4, %s' % (v(g_), v(L)))
    S('v_lshrrev_b32 %s, 1, %s' % (v(f), v(key)))
    S('v_mul_u32_u24 %s, 384, %s' % (v(key), v(key)))
    for par in range(2):
        S('v_add_u32 %s, %d, %s' % (v(t), 4 * par, v(g_)))
        S('v_xor_b32 %s, %s, %s' % (v(t), v(t), v(f)))
        S('v_lshl_add_u32 %s, %s, 4, %s' % (v(V_KA0 + par), v(t), v(key)))
    r, row, x, c = T + 2, T + 4, T + 5, T + 6
    S('v_bfe_u32 %s, %s, 2, 2' % (v(r), v(L)))
    S('v_lshl_add_u32 %s, %s, 2, %s' % (v(row), v(g_), v(r)))
    S('v_and_b32 %s, 3, %s' % (v(c), v(L)))
    S('v_bfe_u32 %s, %s, 1, 2' % (v(x), v(row)))
    S('v_mul_u32_u24 %s, 384, %s' % (v(row), v(row)))
    S('v_lshl_add_u32 %s, %s, 3, %s' % (v(r), v(c), v(row)))
    for d4 in range(4):
        S('v_xor_b32 %s, %d, %s' % (v(T + 7), d4, v(x)))
        S('v_lshl_add_u32 %s, %s, 5, %s' % (v(V_VA0 + d4), v(T + 7), v(r)))
    S('v_mul_u32_u24 %s, 1536, %s' % (v(T + 7), v(g_)))
    S('v_add_u32 %s, %s, %s' % (v(row), v(row), v(T + 7)))
    S('v_lshl_add_u32 %s, %s, 4, %s' % (v(r), v(c), v(row)))
    S('v_and_b32 %s, 1, %s' % (v(x), v(x)))
    for par in range(2):
        S('v_xor_b32 %s, %d, %s' % (v(T + 7), par, v(x)))
        S('v_lshl_add_u32 %s, %s, 6, %s' % (v(V_WA + par), v(T + 7), v(r)))
        for st in (1, 2): S('v_add_u32 %s, %d, %s' % (v(V_WA + 2 * st + par), st * 2 * SLOT, v(V_WA + par)))
    for qb in range(4): S('v_mov_b32 %s, 0xff800000' % v(V_M + qb))
    S('v_mov_b32 %s, 0\nv_mov_b32 %s, %d' % (v(T + 2), v(T + 3), FLAG_OFF))
    S('ds_write_b32 %s, %s' % (v(T + 3), v(T + 2)), tag='flag0')

    A = Gaps(960)
    LA = opts.get('LA', 3); XA = opts.get('XA', 76)
    def WF(pair, ks): return 192 + ((pair % 6) * 2 + ks) * 4
    for st in range(10):
        for db in range(12):
            for qb in range(4):
                for ks in range(2):
                    d = v(QA(db, qb), 4)
                    A.mf[st * 96 + db * 8 + qb * 2 + ks] = '%s %s, %s, %s, %s' % (MF, d, a(WF(st * 12 + db, ks), 4), a(hreg(st, ks, qb), 4), '0' if (st == 0 and ks == 0) else d)
    def wreads(pair):
        st, db = pair // 12, pair % 12
        base = RING[st % 6]; sset = base // (2 * SLOT)
        j, b = db >> 1, db & 1
        return [('ds_read_b64_tr_b16 %s, %s offset:%d' % (a(WF(pair, ks) + 2 * eh, 2), v(V_WA + 2 * sset + (j & 1)),
                 base - sset * 2 * SLOT + (32 * ks + 4 * eh) * 384 + (j >> 1) * 128 + 8 * b), ('WF', pair)) for ks in range(2) for eh in range(2)]
    for st in range(10):
        bg = st * 96 + XA
        vmtags = [('E', st + 1), ('H', st + 1)] if st < 9 else [('K', 0)]
        A.add(bg, [('WAIT', vmtags, [('WF', st * 12 + 11)]), ('s_barrier', None)] + ([('s_memtime %s' % s(76 + 2 * st, 2), 'stamp')] if stamp else []), 8)
    pre_reads = []
    nxt = -1
    for pair in range(120):
        if pair < LA: pre_reads += wreads(pair); continue
        st = pair // 12
        for k, rd in enumerate(wreads(pair)):
            lo = max(8 * (pair - LA) + 2 * k, nxt + 1, (st - 1) * 96 + XA + 1)
            nxt = A.place(rd, lo, 8 * pair - 3, mem=True)
    for pair in range(2, 120, 2):
        A.place(('WAIT', None, [('WF', pair), ('WF', pair + 1)]), 8 * pair - 1, 8 * pair - 1)
    order = list(range(NB, 15))
    plan = {p: [] for p in range(10)}
    he = NB; ee = NB
    for p in range(10):
        quota = opts.get('quota', 20)
        cnt = 0
        while True:
            can_e = ee < 15 and ee - 6 <= p - 1
            can_h = he < 10 and he - 6 <= p - 2
            if can_h and (he <= ee or not can_e) and cnt + 8 <= quota: plan[p].append(hloads(he)); he += 1; cnt += 8
            elif can_e and cnt + 6 <= quota: plan[p] += elem(ee); ee += 1; cnt += 6
            else: break
    assert he == 10 and ee == 15
    for p in range(10):
        lo = 0 if p == 0 else (p - 1) * 96 + XA + 1
        hi_ = p * 96 + XA - 1
        n = sum(len(t[1]) for t in plan[p]); k = 0; cur = lo
        for t in plan[p]:
            if t[0] is not None: cur = A.place(t[0], cur, hi_) + 1
            for x in t[1]:
                cur = A.place(x, max(cur, lo + (k * (hi_ - lo - 4)) // max(n, 1)), hi_, cost=8, mem=True) + 1; k += 1
            if t[2] is not None: cur = A.place(t[2], cur, hi_ + 8, cost=4 if '\n' not in t[2][0] else 8)
    cv = []
    cur = 0
    for i in range(96):
        ks = i // 16
        it = ('v_cvt_pk_bf16_f32 %s, %s, %s' % (v(i), v(2 * i), v(2 * i + 1)), None)
        lo = 864 + 16 * ks + 8 + 2 * ((i % 16) // 4) + 8
        if max(lo, cur) < 959 and opts.get('cvtov', True):
            try:
                cur = A.place(it, max(lo, cur), 959); continue
            except AssertionError: cur = 960
        cv.append(it)
    S.wait(vm=[('E', 0), ('H', 0)], lg=0)
    S('s_barrier')
    if stamp: S('s_memtime %s' % s(S_TS + 2, 2)); S('s_waitcnt lgkmcnt(0)')
    for x in pre_reads: put(S, x)
    S.wait(lg=[('WF', 0), ('WF', 1)])
    A.emit(S)
    if stamp: S('s_memtime %s' % s(S_TS + 4, 2)); S('s_waitcnt lgkmcnt(0)')
    S('s_nop 7')
    for x in cv: put(S, x)
    if opts.get('touch', True):
        S('s_load_dwordx2 s[32:33], s[0:1], %d\ns_load_dwordx4 s[36:39], s[0:1], %d\ns_load_dwordx4 s[52:55], s[0:1], %d' % (KARG['wo'], KARG['w1'], KARG['w3']))
        S('s_lshl_b32 s51, s2, 14\ns_lshl_b32 s50, %s, 12\ns_add_u32 s51, s51, s50\ns_mov_b32 s50, 0x400000' % s(S_WAVE))
        S('v_lshl_add_u32 %s, %s, 2, s51' % (v(T + 9), v(V_L16)))
        S('s_waitcnt lgkmcnt(0)')
        for k, (r_, b_, sz) in enumerate(((S_W, 32, 6144 * 1280), (S_H, 36, 640 * 1280), (56, 38, 640 * 1280), (32, 52, 640 * 3072), (36, 54, 640 * 3072))):
            S('s_mov_b32 %s, %s\ns_mov_b32 %s, %s\ns_mov_b32 %s, %d\ns_mov_b32 %s, 0x20000' % (s(r_), s(b_), s(r_ + 1), s(b_ + 1), s(r_ + 2), sz, s(r_ + 3)))
            S('buffer_load_dword %s, %s, %s, 0 offen' % (v(T + 10 + k), v(T + 9), s(r_, 4)), tag='touch')
            if k == 0: S('buffer_load_dword %s, %s, %s, s50 offen' % (v(T + 15), v(T + 9), s(r_, 4)), tag='touch')
    S('L_attn_restart:')
    S('s_mov_b32 %s, %d\ns_mov_b32 %s, %d' % (s(S_KR), KSLOT[0], s(S_VR), VSLOT[2]))
    for par in range(2): S('v_mov_b32 %s, %s' % (v(V_KA + par), v(V_KA0 + par)))
    def kread(kb, ks, tag):
        return ('ds_read_b128 %s, %s offset:%d' % (a(A_KF + 4 * ks, 4), v(V_KA + (ks & 1)), kb * 16 * 384 + (ks >> 1) * 128), tag)
    def vread(db, kh, eh, tag):
        return ('ds_read_b64_tr_b16 %s, %s offset:%d' % (a(A_VF + ((db % 3) * 2 + kh) * 4 + 2 * eh, 2), v(V_VA + (db & 3)), (32 * kh + 16 * eh) * 384 + (db >> 2) * 128), tag)
    for ks in range(6): put(S, kread(0, ks, ('KF', -4)))
    for qb in range(4): S('v_mov_b32 %s, 0' % v(V_L + qb))
    S.wait(lg=0)
    for qb in range(4):
        for ks in range(6):
            S('%s %s, %s, %s, %s' % (MF, v(SR(qb), 4), a(A_KF + 4 * ks, 4), v(Q(qb, ks), 4), '0' if ks == 0 else v(SR(qb), 4)))
    S('s_nop 3')
    def xlane(op, regs, tmp):
        for k, r_ in enumerate(regs): S('v_mov_b32 %s, %s' % (v(tmp + k), v(r_)))
        for k, r_ in enumerate(regs): S('v_permlane32_swap_b32 %s, %s' % (v(r_), v(tmp + k)))
        for k, r_ in enumerate(regs): S('%s %s, %s, %s' % (op, v(r_), v(r_), v(tmp + k)))
        for k, r_ in enumerate(regs): S('v_mov_b32 %s, %s' % (v(tmp + k), v(r_)))
        for k, r_ in enumerate(regs): S('v_permlane16_swap_b32 %s, %s' % (v(r_), v(tmp + k)))
        for k, r_ in enumerate(regs): S('%s %s, %s, %s' % (op, v(r_), v(r_), v(tmp + k)))
    for qb in range(4): S('v_max3_f32 %s, %s, %s, %s' % (v(T + qb), v(SR(qb)), v(SR(qb) + 1), v(V_M + qb)))
    for qb in range(4): S('v_max3_f32 %s, %s, %s, %s' % (v(T + qb), v(SR(qb) + 2), v(SR(qb) + 3), v(T + qb)))
    xlane('v_max_f32', [T + qb for qb in range(4)], T + 4)
    for qb in range(4):
        for i in range(4): S('v_sub_f32 %s, 0, %s' % (v(V_NEGM + 4 * qb + i), v(T + qb)))
    S('s_mov_b32 %s, 15' % s(S_CNT))

    M = Gaps(33 * 192, base=-192)
    WO = opts.get('WO', 10)
    def gi(Tp, w, g): return Tp * 192 + w * 48 + g
    for Tp in range(-1, 32):
        M.mark[Tp * 192] = 'p%d' % Tp
        for w in range(4):
            if Tp <= 30:
                for qb in range(4):
                    for ks in range(6):
                        M.mf[gi(Tp, w, qb * 6 + ks) - M.base] = '%s %s, %s, %s, %s' % (MF, v(SR(qb), 4), a(A_KF + 4 * ks, 4), v(Q(qb, ks), 4), v(V_NEGM + 4 * qb, 4) if ks == 0 else v(SR(qb), 4))
            if Tp >= 0:
                for dd in range(3):
                    db = 3 * w + dd
                    for qb in range(4):
                        for kh in range(2):
                            d = a(OA(db, qb), 4)
                            M.mf[gi(Tp, w, 24 + dd * 8 + qb * 2 + kh) - M.base] = '%s %s, %s, %s, %s' % (MF, d, a(A_VF + (dd * 2 + kh) * 4, 4), v(P(Tp & 1, kh, qb), 4), '0' if (Tp == 0 and kh == 0) else d)
    N = lambda t_: (t_, None)
    if not opts.get('nosm'):
        for Tp in range(-1, 31):
            for w in range(4):
                for qb in range(4):
                    g0 = gi(Tp, w, WO + 12 * qb); b = SR(qb); pr = P((Tp + 1) & 1, w >> 1, qb) + 2 * (w & 1)
                    for r_ in range(4):
                        M.add(g0 + 3 * r_, N('v_exp_f32 %s, %s' % (v(b + r_), v(b + r_))), 8)
                        M.add(g0 + 3 * r_ + 1, N('v_add_f32 %s, %s, %s' % (v(V_L + qb), v(V_L + qb), v(b + r_))), 4)
                    M.add(g0 + 5, N('v_cvt_pk_bf16_f32 %s, %s, %s' % (v(pr), v(b), v(b + 1))), 4)
                    M.add(g0 + 11, N('v_cvt_pk_bf16_f32 %s, %s, %s' % (v(pr + 1), v(b + 2), v(b + 3))), 4)
    VG = [2, 3, 5, 8, 9, 11, 14, 15, 17, 20, 21, 23]
    KG = [32, 33, 35, 38, 39, 41]
    for Tp in range(-1, 32):
        for w in range(4):
            W = Tp * 4 + w
            if Tp >= 0:
                k = 0
                for dd in range(3):
                    for kh in range(2):
                        for eh in range(2):
                            M.add(gi(Tp, w, VG[k]), vread(3 * w + dd, kh, eh, ('VF', W, dd)), 4, mem=True); k += 1
                M.add(gi(Tp, w, 18), ('WAIT', None, [('VF', W, 0)]), 4)
            last = Tp == 31
            if w == 3 and Tp <= 30:
                vmt = 0 if opts.get('nodma') else [('V', Tp + 1), ('K', Tp + 2)]
                M.add(gi(Tp, w, 30), [('WAIT', vmt, 0), N('s_barrier')], 8)
            elif Tp >= 0:
                M.add(gi(Tp, w, 30), ('WAIT', None, 0), 4)
            if not last:
                for ks in range(6): M.add(gi(Tp, w, KG[ks]), kread((w + 1) & 3, ks, ('KF', W + 1)), 4, mem=True)
                M.add(gi(Tp, w, 47), ('WAIT', None, [('KF', W + 1)]), 4)
    for Tp in range(-1, 31):
        if True:
            lo, hi_ = gi(Tp, 2, 42), gi(Tp, 3, 29)
            c = M.place(N('s_add_u32 %s, %s, %s' % (s(S_KD), s(S_KR), s(S_WB))), lo, hi_, half=30)
            c = M.place(N('s_add_u32 %s, %s, %d' % (s(S_KR), s(S_KR), SLOT)), c, hi_, half=30)
            c = M.place([N('s_cmp_eq_u32 %s, %d' % (s(S_KR), 3 * SLOT)), N('s_cmov_b32 %s, 0' % s(S_KR))], c, hi_, cost=8)
            for par in range(2): c = M.place(N('v_add_u32 %s, %s, %s' % (v(V_KA + par), s(S_KR), v(V_KA0 + par))), c, hi_, half=30)
        lo, hi_ = gi(Tp, 3, 24), gi(Tp + 1, 0, 1)
        c = M.place(N('s_add_u32 %s, %s, %s' % (s(S_VD), s(S_VR), s(S_WB))), lo, hi_, half=30)
        c = M.place(N('s_add_u32 %s, %s, %d' % (s(S_VR), s(S_VR), SLOT)), c, hi_, half=30)
        c = M.place([N('s_cmp_eq_u32 %s, %d' % (s(S_VR), 6 * SLOT)), N('s_cmov_b32 %s, %d' % (s(S_VR), 3 * SLOT))], c, hi_, cost=8)
        for d4 in range(4): c = M.place(N('v_add_u32 %s, %s, %s' % (v(V_VA + d4), s(S_VR), v(V_VA0 + d4))), c, hi_, half=30)
    if not opts.get('nodma'):
        for Tp in range(-1, 30):
            lo, hi_ = gi(Tp + 1, 0, 0), gi(Tp + 1, 3, 23)
            cur = lo; k = 0
            for kind, dst, tj in (('K', S_KD, Tp + 4), ('V', S_VD, Tp + 3)):
                for h in range(2):
                    t = dma_tile(kind, (s(dst), h * TILE), (kind, tj))
                    cur = M.place(t[0], cur, hi_, half=12) + 1
                    for x in t[1]:
                        cur = M.place(x, max(cur, lo + (k * (hi_ - lo - 24)) // 12), hi_, cost=8, mem=True) + 1; k += 1
                    cur = M.place(t[2], cur, hi_, half=12)
    if stamp: S('s_memtime %s' % s(S_TS + 6, 2)); S('s_waitcnt lgkmcnt(0)')
    M.emit(S)
    S.mark('end')
    if stamp: S('s_memtime %s' % s(S_TS + 8, 2)); S('s_waitcnt lgkmcnt(0)')
    xlane('v_add_f32', [V_L + qb for qb in range(4)], T)
    S('s_mov_b32 s51, %d' % thr)
    S('v_max3_f32 %s, %s, %s, %s' % (v(T), v(V_L), v(V_L + 1), v(V_L + 2)))
    for qb in range(4): S('v_cmp_ngt_f32 %s, s51, %s' % (s(32 + 2 * qb, 2), v(V_L + qb)))
    for qb in range(4): S('v_rcp_f32 %s, %s' % (v(V_L + qb), v(V_L + qb)))
    S('v_mov_b32 %s, 1\nv_mov_b32 %s, %d' % (v(T + 2), v(T + 3), FLAG_OFF))
    S('s_or_b64 s[32:33], s[32:33], s[34:35]\ns_or_b64 s[36:37], s[36:37], s[38:39]\ns_or_b64 s[32:33], s[32:33], s[36:37]')
    S('s_cbranch_scc0 L_attn_noflag')
    S('ds_write_b32 %s, %s' % (v(T + 3), v(T + 2)), tag='flag1')
    S('L_attn_noflag:')
    S('s_waitcnt lgkmcnt(0)\ns_barrier')
    S('ds_read_b32 %s, %s' % (v(T + 2), v(T + 3)), tag='flagr')
    S('s_mov_b32 s32, 0\ns_mov_b32 s33, %d\ns_mov_b32 s34, %d\ns_mov_b32 s35, %d' % (196608, 2 * 196608, 3 * 196608))
    S('s_waitcnt lgkmcnt(0)')
    S('v_readfirstlane_b32 s51, %s' % v(T + 2))
    S('s_nop 0')
    S('s_cmp_gt_u32 s51, %s' % s(S_PASS))
    S('s_cbranch_scc1 L_attn_fallback')
    k = 0
    for j in range(6):
        for qb in range(4):
            tb = 128 + (k % 4) * 8; pb = 96 + (k % 4) * 4; k += 1
            for b in range(2):
                for i in range(4): S('v_accvgpr_read_b32 %s, %s' % (v(tb + 4 * b + i), a(OA(2 * j + b, qb) + i)))
            for i in range(8): S('v_mul_f32 %s, %s, %s' % (v(tb + i), v(tb + i), v(V_L + qb)))
            for i in range(4): S('v_cvt_pk_bf16_f32 %s, %s, %s' % (v(pb + i), v(tb + 2 * i), v(tb + 2 * i + 1)))
            S('buffer_store_dwordx4 %s, %s, %s, %s offen offset:%d' % (v(pb, 4), v(V_L16B if j >= 4 else V_L16), s(S_O, 4), s(32 + qb), (j % 4) * 1024))
    if stamp:
        S('s_waitcnt vmcnt(0)')
        S('s_memtime %s' % s(S_TS + 10, 2)); S('s_memrealtime %s' % s(S_TS + 12, 2)); S('s_waitcnt lgkmcnt(0)')
        S('s_sub_u32 %s, %s, %s' % (s(S_TS + 12), s(S_TS + 12), s(S_TS + 14)))
        for i in range(7): S('v_mov_b32 %s, %s' % (v(96 + i), s(S_TS + 2 * i)))
        S('s_getreg_b32 s51, hwreg(HW_REG_XCC_ID)\nv_mov_b32 v103, s51')
        S('s_lshl_b32 s51, s2, 2\ns_add_u32 s51, s51, %s\ns_lshl_b32 s51, s51, 5\nv_mov_b32 v104, s51' % s(S_WAVE))
        S('buffer_store_dwordx4 v[96:99], v104, %s, 0 offen\nbuffer_store_dwordx4 v[100:103], v104, %s, 0 offen offset:16' % (s(S_ST, 4), s(S_ST, 4)))
        for i in range(10): S('v_mov_b32 %s, %s' % (v(108 + i), s(76 + 2 * i)))
        S('v_lshlrev_b32 v104, 1, v104\ns_mov_b32 s51, 0x10000')
        for i in range(3): S('buffer_store_dwordx4 %s, v104, %s, s51 offen offset:%d' % (v(108 + 4 * i, 4), s(S_ST, 4), 16 * i))
    S('s_endpgm')
    S.resolve()
    S.autonop()
    errs = S.check('attn')
    Fb = Stream()
    Fb('L_attn_fallback:')
    Fb('s_waitcnt vmcnt(0)\ns_barrier')
    Fb('s_mov_b32 %s, 1\ns_mov_b32 %s, 0\ns_mov_b32 %s, 64' % (s(S_PASS), s(S_KOFF), s(S_CNT)))
    for par in range(2): Fb('v_mov_b32 %s, %s' % (v(V_KA + par), v(V_KA0 + par)))
    Fb('L_attn_fb_loop:')
    put_tile(Fb, dma_tile('K', (s(S_WB), KSLOT[0]), 'k'))
    Fb('s_waitcnt vmcnt(0)\ns_barrier')
    for kb in range(2):
        for ks in range(6): put(Fb, kread(kb, ks, 'kf'))
        Fb('s_waitcnt lgkmcnt(0)')
        for qb in range(4):
            for ks in range(6):
                Fb('%s %s, %s, %s, %s' % (MF, v(SR(qb), 4), a(A_KF + 4 * ks, 4), v(Q(qb, ks), 4), '0' if ks == 0 else v(SR(qb), 4)))
        Fb('s_nop 7')
        for qb in range(4):
            for i in range(2): Fb('v_max3_f32 %s, %s, %s, %s' % (v(V_M + qb), v(SR(qb) + 2 * i), v(SR(qb) + 2 * i + 1), v(V_M + qb)))
    Fb('s_barrier')
    Fb('s_sub_u32 %s, %s, 1\ns_cmp_lg_u32 %s, 0\ns_cbranch_scc1 L_attn_fb_loop' % (s(S_CNT), s(S_CNT), s(S_CNT)))
    Fb('s_mov_b32 %s, 0\ns_mov_b32 %s, 0' % (s(S_KOFF), s(S_VOFF)))
    for e in range(10, 15):
        for t in elem(e): put_tile(Fb, t)
    Fb('s_waitcnt vmcnt(0)\ns_barrier\ns_branch L_attn_restart')
    Fb.resolve(); errs += Fb.check('fallback')
    pos = fold(S, [('p%d' % (1 + 2 * k), 'p%d' % (3 + 2 * k)) for k in range(15)])
    out = Stream()
    out.ins = S.ins[:pos['p1']]
    out('L_attn_loop:')
    out.ins += S.ins[pos['p1']:pos['p3']]
    out('s_sub_u32 %s, %s, 1\ns_cmp_lg_u32 %s, 0\ns_cbranch_scc1 L_attn_loop' % (s(S_CNT), s(S_CNT), s(S_CNT)))
    out.ins += S.ins[pos['p31']:]
    out.ins += Fb.ins
    out('L_attn_end:\ns_endpgm')
    return name, out.text(), kernel_desc(name, 512, 256, 102), LDS_BYTES, errs

def write(fn, **kw):
    name, text, desc, lds, errs = gen(stamp=True, **kw)
    for e in errs[:30]: print(e)
    print(fn, len(errs), 'errors')
    full = '; @launch kernel=%s grid=(256,1,1) block=(256,1,1) lds=%d\n.amdgcn_target "amdgcn-amd-amdhsa--gfx950"\n.text\n' % (name, lds)
    full += kernel_head(name) + text + '.section .rodata,"a"\n.p2align 6\n' + desc
    open('dev/' + fn, 'w').write(full)

if __name__ == '__main__':
    import sys
    for i, o in enumerate(eval(sys.argv[1]) if len(sys.argv) > 1 else [{}]):
        write('t_a16_%d.s' % i, opts=o)
```

```python
from asmlib import *
from layout import *
from gen_small import srd, unpack, xsum, finish, f32, LOG2E, meanrstd
from gen_attn16 import Gaps, put
import math
MF = 'v_mfma_f32_16x16x32_bf16'

def magic(d, n):
    for sh in range(8, 24):
        m = -(-(1 << sh) // d)
        if all((i * m) >> sh == i // d for i in range(n)) and n * m < (1 << 32) and m < (1 << 24): return m, sh
    raise AssertionError

def dma_offsets(S, dst, n, cpr, ldw, swz, lane, t, row0=None, wrap4=True):
    m, sh = magic(cpr, 64 * n)
    for i in range(n):
        S('v_add_u32 %s, %d, %s' % (v(t), 64 * i, v(lane)))
        S('v_mul_u32_u24 %s, %d, %s' % (v(t + 1), m, v(t)))
        S('v_lshrrev_b32 %s, %d, %s' % (v(t + 1), sh, v(t + 1)))
        S('v_mul_u32_u24 %s, %d, %s' % (v(t + 2), cpr, v(t + 1)))
        S('v_sub_u32 %s, %s, %s' % (v(t), v(t), v(t + 2)))
        if swz:
            S('v_bfe_u32 %s, %s, 2, 1' % (v(t + 2), v(t + 1)))
            S('v_lshlrev_b32 %s, 1, %s' % (v(t + 2), v(t + 2)))
            S('v_xor_b32 %s, %s, %s' % (v(t), v(t), v(t + 2)))
        S('v_mul_u32_u24 %s, %d, %s' % (v(t + 1), ldw, v(t + 1)))
        S('v_lshl_add_u32 %s, %s, 4, %s' % (v(t), v(t), v(t + 1)))
        S('v_subrev_u32 %s, %d, %s' % (v(dst + i), 1024 * (i & 3), v(t)))

def read_addr(S, dst, rowb, swz, lane, t, sbase):
    S('v_lshrrev_b32 %s, 2, %s' % (v(t), v(lane)))
    S('v_mul_u32_u24 %s, %d, %s' % (v(t), rowb, v(t)))
    S('v_and_b32 %s, 3, %s' % (v(t + 1), v(lane)))
    S('v_lshl_add_u32 %s, %s, 3, %s' % (v(t), v(t + 1), v(t)))
    if sbase: S('v_add_u32 %s, %s, %s' % (v(t), sbase, v(t)))
    if not swz: S('v_mov_b32 %s, %s' % (v(dst), v(t))); return
    S('v_bfe_u32 %s, %s, 4, 1' % (v(t + 1), v(lane)))
    S('v_lshl_add_u32 %s, %s, 5, %s' % (v(dst), v(t + 1), v(t)))
    S('v_xor_b32 %s, 1, %s' % (v(t + 1), v(t + 1)))
    S('v_lshl_add_u32 %s, %s, 5, %s' % (v(dst + 1), v(t + 1), v(t)))

def gelu(S, regs, tmp, vc1):
    c0 = -2 * LOG2E * math.sqrt(2 / math.pi)
    for k in range(0, len(regs), len(tmp)):
        grp = list(zip(regs[k:k + len(tmp)], tmp))
        for y, t in grp: S('v_mul_f32 %s, %s, %s' % (v(t), v(y), v(y)))
        for y, t in grp: S('v_fmaak_f32 %s, %s, %s, %s' % (v(t), v(vc1), v(t), f32(c0)))
        for y, t in grp: S('v_mul_f32 %s, %s, %s' % (v(t), v(t), v(y)))
        for y, t in grp: S('v_exp_f32 %s, %s' % (v(t), v(t)))
        for y, t in grp: S('v_add_f32 %s, 1.0, %s' % (v(t), v(t)))
        for y, t in grp: S('v_rcp_f32 %s, %s' % (v(t), v(t)))
        for y, t in grp: S('v_mul_f32 %s, %s, %s' % (v(y), v(y), v(t)))
GELU_C1 = -2 * LOG2E * math.sqrt(2 / math.pi) * 0.044715

def gen_ksplit(kind):
    cfg = {'g1': dict(TB=4, NB=5, KS=5, w='w1', ldw=1280, b=WS_HN, KT=20, RW=5),
           'g2': dict(TB=4, NB=5, KS=5, w='w2', ldw=1280, b=WS_G, KT=20, RW=5),
           'g3': dict(TB=8, NB=6, KS=5, w='w3', ldw=3072, b=WS_X1, KT=20, RW=5),
           'g4': dict(TB=4, NB=5, KS=12, w='w4', ldw=1280, b=WS_U, KT=48, RW=6)}[kind]
    TB, NB, KS, ldw, KT, RW = (cfg[k] for k in ('TB', 'NB', 'KS', 'ldw', 'KT', 'RW'))
    TW = TB // 4; swz = NB % 2 == 0; rowb = NB * 32
    REGION = max(RW * NB, 3 * NB * TW) * 1024
    name = kind + '_kernel'; S = Stream()
    NACC = TB * NB * 4
    E = NACC
    VB = 224 if TB == 8 else 128
    V_WO, V_BO, V_RA, V_RED, V_L16, V_TOK, V_C1, T = VB, VB + 6, VB + 14, VB + 16, VB + 20, VB + 21, VB + 22, VB + 23
    L = T + 8
    def ACC(tb, nb): return (tb * NB + nb) * 4
    def BF(ks, tb): return (ks * TB + tb) * 4
    def AF(ks, nb): return 192 + ((ks & 1) * NB + nb) * 4
    S_W, S_B, S_WS = 8, 12, 6
    S('s_cmp_ge_u32 s2, 256\ns_cbranch_scc1 L_%s_end' % kind)
    S('s_load_dwordx2 s[4:5], s[0:1], %d\ns_load_dwordx2 s[6:7], s[0:1], %d' % (KARG[cfg['w']], KARG['ws']))
    if kind == 'g4': S('s_load_dwordx2 s[40:41], s[0:1], %d' % KARG['out'])
    S('v_lshrrev_b32 %s, 6, v0\nv_and_b32 %s, 63, v0' % (v(T), v(L)))
    S('v_readfirstlane_b32 s24, %s' % v(T))
    lg = 2 if TB == 4 else 1
    S('s_and_b32 s3, s2, 7\ns_lshl_b32 s3, s3, %d\ns_lshr_b32 s25, s2, 3\ns_and_b32 s26, s25, %d\ns_add_u32 s3, s3, s26\ns_lshr_b32 s25, s25, %d' % (lg, (1 << lg) - 1, lg))
    S('s_mul_i32 s3, s3, %d' % TB)
    dma_offsets(S, V_WO, NB, 2 * NB, ldw, swz, L, T)
    S('s_mul_i32 s27, s24, %d' % REGION)
    S('s_mul_i32 s28, s24, %d\ns_mul_i32 s29, s25, %d\ns_add_u32 s28, s28, s29' % (KS * 32 * ldw, rowb))
    S('v_lshlrev_b32 %s, 4, %s' % (v(V_L16), v(L)))
    if kind == 'g2':
        S('s_lshr_b32 s30, s24, 1\ns_add_u32 s30, s30, 1\ns_sub_u32 s31, 0, s30\ns_and_b32 s32, s24, 1\ns_cmp_eq_u32 s32, 1\ns_cselect_b32 s30, s30, s31')
        S('v_and_b32 %s, 15, %s\nv_and_b32 %s, 0x300, %s' % (v(T + 3), v(L), v(T + 4), v(V_L16)))
        S('v_add_u32 %s, s30, %s' % (v(T + 3), v(T + 3)))
    for i in range(TB):
        S('s_mul_i32 s31, s24, %d\ns_add_u32 s31, s31, %d\ns_and_b32 s31, s31, %d\ns_add_u32 s31, s31, s3' % (TW, i, TB - 1))
        if i == 0: S('s_mov_b32 s33, s31')
        if kind == 'g2':
            S('s_lshl_b32 s31, s31, 4')
            S('v_add_u32 %s, s31, %s' % (v(T), v(T + 3)))
            S('v_ashrrev_i32 %s, 4, %s\nv_and_b32 %s, 15, %s' % (v(T + 1), v(T), v(T + 2), v(T)))
            S('v_mul_u32_u24 %s, %d, %s' % (v(T + 1), KT * 1024, v(T + 1)))
            S('v_lshl_add_u32 %s, %s, 4, %s' % (v(T + 2), v(T + 2), v(T + 4)))
            S('v_add_u32 %s, %s, %s' % (v(T + 1), v(T + 1), v(T + 2)))
            S('v_cmp_gt_i32 vcc, 0, %s' % v(T))
            S('v_mov_b32 %s, 0x80000000' % v(T + 2))
            S('v_cndmask_b32 %s, %s, %s, vcc' % (v(V_BO + i), v(T + 1), v(T + 2)))
        else:
            S('s_mul_i32 s31, s31, %d' % (KT * 1024))
            S('v_add_u32 %s, s31, %s' % (v(V_BO + i), v(V_L16)))
    S('s_waitcnt lgkmcnt(0)')
    S('s_add_u32 %s, s4, s28\ns_addc_u32 %s, s5, 0\ns_sub_u32 %s, %d, s28\ns_mov_b32 %s, 0x20000' % (s(S_W), s(S_W + 1), s(S_W + 2), KS * 128 * ldw, s(S_W + 3)))
    srd(S, S_B, S_WS, cfg['b'], 128 * KT * 1024)
    S('s_mov_b32 s34, 0\ns_mul_i32 s35, s24, %d' % (KS * 1024))
    def issue(ks):
        base = (ks % RW) * NB * 1024
        for i in range(NB):
            if i % 4 == 0: S('s_add_u32 m0, s27, %d\ns_nop 0' % (base + 1024 * i))
            S('buffer_load_dwordx4 %s, %s, s34 offen offset:%d lds' % (v(V_WO + i), s(S_W, 4), 1024 * (i & 3)), tag=('L', ks))
        S('s_add_u32 s34, s34, %d' % (32 * ldw))
        for tb in range(TB):
            S('buffer_load_dwordx4 %s, %s, %s, s35 offen offset:%d' % (a(BF(ks, tb), 4), v(V_BO + tb), s(S_B, 4), 1024 * (ks & 3)), tag=('L', ks))
        if ks & 3 == 3: S('s_add_u32 s35, s35, 4096')
    UP = min(RW, 60 // (NB + TB))
    for ks in range(UP): issue(ks)
    read_addr(S, V_RA, rowb, swz, L, T, 's27')
    for j in range(1, 4):
        S('s_sub_u32 s31, s24, %d\ns_and_b32 s31, s31, 3\ns_mul_i32 s31, s31, %d\ns_add_u32 s31, s31, %d' % (j, REGION, (j - 1) * NB * TW * 1024))
        S('v_add_u32 %s, s31, %s' % (v(V_RED + j), v(V_L16)))
    S('v_add_u32 %s, s27, %s' % (v(V_RED), v(V_L16)))
    S('v_mov_b32 %s, %s' % (v(V_C1), f32(GELU_C1)))
    if NB == 5:
        for b in range(5):
            S('s_mul_i32 s31, s25, 5\ns_add_u32 s31, s31, %d\ns_and_b32 s32, s31, 1\ns_lshr_b32 s31, s31, 1\ns_lshl_b32 s31, s31, 10\ns_lshl_b32 s32, s32, 3\ns_add_u32 %s, s31, s32' % (b, s(44 + b)))
        S('s_mul_i32 s31, s33, 20480')
        S('v_add_u32 %s, s31, %s' % (v(V_TOK), v(V_L16)))
    def epi_loads():
        if kind == 'g2':
            srd(S, 16, S_WS, WS_H2, ACT); srd(S, 20, S_WS, WS_X1, ACT); srd(S, 36, S_WS, WS_ST, 2048 * 64)
            for b in range(5): S('buffer_load_dwordx2 %s, %s, s[16:19], %s offen' % (v(E + 2 * b, 2), v(V_TOK), s(44 + b)), tag='e')
        if kind == 'g1': srd(S, 20, S_WS, WS_G, ACT)
        if kind == 'g4':
            srd(S, 16, S_WS, WS_X1, ACT); srd(S, 20, S_WS, WS_X, ACT); srd(S, 36, S_WS, WS_MOD + 5 * 2560, 2560)
            for b in range(5): S('buffer_load_dwordx2 %s, %s, s[16:19], %s offen' % (v(E + 2 * b, 2), v(V_TOK), s(44 + b)), tag='e')
            for b in range(5): S('buffer_load_dwordx2 %s, %s, s[20:23], %s offen' % (v(E + 10 + 2 * b, 2), v(V_TOK), s(44 + b)), tag='e')
            S('v_lshrrev_b32 %s, 4, %s\nv_lshlrev_b32 %s, 4, %s\ns_mul_i32 s31, s25, 320' % (v(T), v(L), v(T), v(T)))
            for b in range(5): S('buffer_load_dwordx4 %s, %s, s[36:39], s31 offen offset:%d' % (v(E + 20 + 4 * b, 4), v(T), 64 * b), tag='e')
        if kind == 'g3':
            srd(S, 16, S_WS, WS_ST, 2048 * 64); srd(S, 36, S_WS, WS_CS3, 1536 * 4); srd(S, 20, S_WS, WS_U, 2048 * 1536 * 2)
            S('v_and_b32 %s, 15, %s\nv_lshrrev_b32 %s, 4, %s\nv_lshlrev_b32 %s, 4, %s\nv_lshl_add_u32 %s, %s, 6, %s' % (v(T), v(L), v(T + 1), v(L), v(T + 1), v(T + 1), v(T), v(T), v(T + 1)))
            S('s_lshl_b32 s31, s33, 10\ns_mul_i32 s32, s25, 384')
            for i in range(2): S('buffer_load_dwordx4 %s, %s, s[16:19], s31 offen offset:%d' % (v(E + 4 * i, 4), v(T), 1024 * i), tag='e')
            for b in range(6): S('buffer_load_dwordx4 %s, %s, s[36:39], s32 offen offset:%d' % (v(E + 8 + 4 * b, 4), v(T + 1), 64 * b), tag='e')
    nxt = UP; epi_done = False
    EPI = {'g1': -1, 'g2': -1, 'g3': 1, 'g4': 8}[kind]
    if nxt == KS and EPI < 0: epi_loads(); epi_done = True
    for ks in range(KS):
        S.wait(vm=('L', ks))
        rds = []
        for nb in range(NB):
            for eh in range(2):
                reg = V_RA + (nb & 1 if swz else 0)
                off = (ks % RW) * NB * 1024 + 16 * eh * rowb + ((nb & ~1) if swz else nb) * 32
                rds.append(('ds_read_b64_tr_b16 %s, %s offset:%d' % (a(AF(ks, nb) + 2 * eh, 2), v(reg), off), ('A', ks, nb)))
        for x in rds[:4]: put(S, x)
        rds = rds[4:]
        if nxt < min(KS, RW): issue(nxt); nxt += 1
        for nb in range(NB):
            S.wait(lg=('A', ks, nb))
            for tb in range(TB):
                d = v(ACC(tb, nb), 4)
                S('%s %s, %s, %s, %s' % (MF, d, a(AF(ks, nb), 4), a(BF(ks, tb), 4), '0' if ks == 0 else d))
                if rds and tb < 2: put(S, rds.pop(0))
        if nxt < KS and nxt == ks + RW: issue(nxt); nxt += 1
        if nxt == KS and ks >= EPI and not epi_done: epi_loads(); epi_done = True
    for j in range(1, 4):
        for i in range(TW):
            for nb in range(NB):
                S('ds_write_b128 %s, %s offset:%d' % (v(V_RED), v(ACC(j * TW + i, nb), 4), ((j - 1) * TW + i) * NB * 1024 + nb * 1024))
    S('s_waitcnt lgkmcnt(0)\ns_barrier')
    for j in range(1, 4):
        for i in range(TW):
            for nb in range(NB):
                S('ds_read_b128 %s, %s offset:%d' % (v(ACC(j * TW + i, nb), 4), v(V_RED + j), (i * NB + nb) * 1024), tag=('R', j, i, nb))
    N1 = TW * NB * 4
    for j in range(1, 4):
        for i in range(TW):
            for nb in range(NB):
                if nb % 3 == 0 or nb == NB - 1: S.wait(lg=('R', j, i, min(nb + 2, NB - 1)))
                for r in range(4): S('v_add_f32 %s, %s, %s' % (v(ACC(i, nb) + r), v(ACC(i, nb) + r), v(ACC(j * TW + i, nb) + r)))
    X = N1
    if kind == 'g1':
        gelu(S, list(range(20)), list(range(X, X + 10)), V_C1)
        for i in range(10): S('v_cvt_pk_bf16_f32 %s, %s, %s' % (v(X + i), v(2 * i), v(2 * i + 1)))
        for b in range(5): S('buffer_store_dwordx2 %s, %s, s[20:23], %s offen' % (v(X + 2 * b, 2), v(V_TOK), s(44 + b)))
    if kind == 'g2':
        S.wait(vm='e')
        unpack(S, X, E, 10)
        for i in range(20): S('v_add_f32 %s, %s, %s' % (v(i), v(i), v(X + i)))
        for i in range(10): S('v_cvt_pk_bf16_f32 %s, %s, %s' % (v(X + 20 + i), v(2 * i), v(2 * i + 1)))
        for b in range(5): S('buffer_store_dwordx2 %s, %s, s[20:23], %s offen' % (v(X + 20 + 2 * b, 2), v(V_TOK), s(44 + b)))
        unpack(S, 0, X + 20, 10)
        S('v_add_f32 %s, v0, v1\nv_mul_f32 %s, v0, v0\nv_add_f32 %s, v2, v3\nv_mul_f32 %s, v1, v1' % (v(X), v(X + 1), v(X + 2), v(X + 3)))
        for i in range(2, 20):
            o = X + 2 * (i & 1)
            if i >= 4: S('v_add_f32 %s, %s, %s' % (v(o), v(o), v(i)))
            S('v_fmac_f32 %s, %s, %s' % (v(o + 1), v(i), v(i)))
        S('v_add_f32 %s, %s, %s\nv_add_f32 %s, %s, %s' % (v(X), v(X), v(X + 2), v(X + 1), v(X + 1), v(X + 3)))
        xsum(S, [X, X + 1], X + 2, (32, 16))
        S('v_and_b32 %s, 15, %s\nv_lshlrev_b32 %s, 6, %s\ns_lshl_b32 s31, s33, 10\ns_lshl_b32 s32, s25, 3\ns_add_u32 s31, s31, s32' % (v(T), v(L), v(T), v(T)))
        S('buffer_store_dwordx2 %s, %s, s[36:39], s31 offen' % (v(X, 2), v(T)))
    if kind == 'g3':
        S.wait(vm='e')
        for i in range(2):
            S('v_add_f32 %s, %s, %s\nv_add_f32 %s, %s, %s' % (v(E + 4 * i), v(E + 4 * i), v(E + 4 * i + 2), v(E + 4 * i + 1), v(E + 4 * i + 1), v(E + 4 * i + 3)))
        xsum(S, [E, E + 1, E + 4, E + 5], X, (32, 16))
        for i in range(2): meanrstd(S, E + 4 * i, X)
        S('s_mul_i32 s31, s33, 49152\ns_mul_i32 s32, s25, 3072\ns_add_u32 s31, s31, s32\ns_add_u32 s32, s31, 49152')
        for i in range(2):
            for k in range(24):
                r = i * 24 + k
                S('v_fma_f32 %s, -%s, %s, %s' % (v(r), v(E + 4 * i), v(E + 8 + k), v(r)))
                S('v_mul_f32 %s, %s, %s' % (v(r), v(r), v(E + 4 * i + 1)))
            gelu(S, list(range(i * 24, i * 24 + 24)), list(range(X, X + 12)), V_C1)
            for k in range(12): S('v_cvt_pk_bf16_f32 %s, %s, %s' % (v(X + 12 + 12 * i + k), v(i * 24 + 2 * k), v(i * 24 + 2 * k + 1)))
            for j in range(3): S('buffer_store_dwordx4 %s, %s, s[20:23], %s offen offset:%d' % (v(X + 12 + 12 * i + 4 * j, 4), v(V_L16), 's32' if i else 's31', 1024 * j))
    if kind == 'g4':
        srd(S, 16, 40, 0, ACT)
        S('v_and_b32 %s, 15, %s\nv_mul_u32_u24 %s, 1280, %s\nv_lshrrev_b32 %s, 4, %s\nv_lshl_add_u32 %s, %s, 3, %s' % (v(T), v(L), v(T), v(T), v(T + 1), v(L), v(T), v(T + 1), v(T)))
        S('s_mul_i32 s31, s33, 20480\ns_mul_i32 s32, s25, 160\ns_add_u32 s31, s31, s32')
        S.wait(vm='e')
        unpack(S, X, E, 10); unpack(S, X + 20, E + 10, 10)
        for i in range(20): S('v_add_f32 %s, %s, %s' % (v(i), v(i), v(X + i)))
        for i in range(20): S('v_fma_f32 %s, %s, %s, %s' % (v(i), v(i), v(E + 20 + i), v(X + 20 + i)))
        for i in range(10): S('v_cvt_pk_bf16_f32 %s, %s, %s' % (v(X + i), v(2 * i), v(2 * i + 1)))
        for b in range(5): S('buffer_store_dwordx2 %s, %s, s[16:19], s31 offen offset:%d' % (v(X + 2 * b, 2), v(T), 32 * b))
    S('L_%s_end:\ns_endpgm' % kind)
    acc_off = VB + 32
    return finish(name, S, acc_off + 240, acc_off) + ('grid=(256,1,1) block=(256,1,1) lds=%d' % (4 * REGION),)

def gen_oproj():
    name = 'oproj_kernel'; S = Stream()
    NB, ldw, rowb = 10, 1280, 320
    STG = 128 * rowb
    NST = 12; RING = 3
    V_WO, V_BO, V_RA, V_L16, T = 80, 90, 92, 98, 100
    L = T + 8
    def ACC(tb, nb): return (tb * NB + nb) * 4
    def BF(st, ks, tb): return ((st % 3) * 8 + ks * 2 + tb) * 4
    def AF(pair, k): return 96 + ((pair % 6) * 2 + k) * 4
    S('s_cmp_ge_u32 s2, 256\ns_cbranch_scc1 L_oproj_end')
    S('s_load_dwordx2 s[4:5], s[0:1], %d\ns_load_dwordx2 s[6:7], s[0:1], %d' % (KARG['wo'], KARG['ws']))
    S('v_lshrrev_b32 %s, 6, v0\nv_and_b32 %s, 63, v0' % (v(T), v(L)))
    S('v_readfirstlane_b32 s24, %s' % v(T))
    S('s_and_b32 s3, s2, 1\ns_lshl_b32 s3, s3, 3\ns_bfe_u32 s25, s2, 0x30003\ns_add_u32 s3, s3, s25\ns_bfe_u32 s26, s2, 0x20001\ns_lshr_b32 s25, s2, 6')
    dma_offsets(S, V_WO, 10, 20, ldw, True, L, T)
    S('s_mul_i32 s27, s24, %d' % (32 * rowb))
    S('s_mul_i32 s37, s25, %d\ns_mul_i32 s29, s24, %d\ns_add_u32 s37, s37, s29\ns_mul_i32 s28, s26, %d\ns_add_u32 s28, s28, s37' % (rowb, 32 * ldw, 1536 * ldw))
    S('v_lshlrev_b32 %s, 4, %s' % (v(V_L16), v(L)))
    S('s_lshl_b32 s3, s3, 3\ns_lshl_b32 s29, s24, 1\ns_add_u32 s3, s3, s29')
    S('s_mul_i32 s29, s3, %d\ns_mul_i32 s30, s26, %d\ns_add_u32 s29, s29, s30\ns_add_u32 s29, s29, %d' % (192 * 1024, 48 * 1024, WS_O))
    S('s_waitcnt lgkmcnt(0)')
    S('s_add_u32 s8, s4, s28\ns_addc_u32 s9, s5, 0\ns_sub_u32 s10, %d, s37\ns_mov_b32 s11, 0x20000' % (1536 * ldw))
    srd(S, 12, 6, 's29', 48 * 1024)
    S('s_add_u32 s29, s29, %d' % (192 * 1024))
    srd(S, 20, 6, 's29', 48 * 1024)
    S('s_mov_b32 s34, 0\ns_mov_b32 s35, 0')
    N = lambda t_, tag=None: (t_, tag)
    def loads(st):
        out = []
        base = (st % RING) * STG
        for i in range(10):
            if i % 4 == 0: out.append(('m0', N('s_add_u32 m0, s27, %d' % (base + 1024 * i))))
            out.append(('mem', N('buffer_load_dwordx4 %s, s[8:11], s34 offen offset:%d lds' % (v(V_WO + i), 1024 * (i & 3)), ('L', st))))
        out.append(('s', N('s_add_u32 s34, s34, %d' % (128 * ldw))))
        for ks in range(4):
            for tb in range(2):
                out.append(('mem', N('buffer_load_dwordx4 %s, %s, %s, s35 offen offset:%d' % (a(BF(st, ks, tb), 4), v(V_L16), s(12 + 8 * tb, 4), 1024 * ks), ('L', st))))
        out.append(('s', N('s_add_u32 s35, s35, 4096')))
        return out
    for st in range(2):
        for k, x in loads(st):
            put(S, x)
            if k == 'm0': S('s_nop 0')
    read_addr(S, V_RA, rowb, True, L, T, None)
    for k in range(2):
        for sl in (1, 2): S('v_add_u32 %s, %d, %s' % (v(V_RA + 2 * sl + k), sl * STG, v(V_RA + k)))
    S('s_mul_i32 s29, s26, %d\ns_mul_i32 s30, s3, 20480\ns_add_u32 s29, s29, s30\ns_mul_i32 s30, s25, 5120\ns_add_u32 s29, s29, s30\ns_add_u32 s29, s29, %d' % (ACT, WS_PART))
    srd(S, 16, 6, 's29', 20480 + 5120)
    G = Gaps(NST * 80, budget=12)
    LA = 3; XB = 66
    def reads(P_):
        st, p = P_ // 20, P_ % 20
        kk, nb = p // 10, p % 10
        return [N('ds_read_b64_tr_b16 %s, %s offset:%d' % (a(AF(P_, k) + 2 * eh, 2), v(V_RA + 2 * (st % RING) + (nb & 1)),
                  ((kk * 2 + k) * 32 + 16 * eh) * rowb + (nb & ~1) * 32), ('A', P_)) for k in range(2) for eh in range(2)]
    for P_ in range(NST * 20):
        st, p = P_ // 20, P_ % 20
        kk, nb = p // 10, p % 10
        for tb in range(2):
            for k in range(2):
                d = v(ACC(tb, nb), 4)
                G.mf[4 * P_ + 2 * tb + k] = '%s %s, %s, %s, %s' % (MF, d, a(AF(P_, k), 4), a(BF(st, kk * 2 + k, tb), 4), '0' if (st == 0 and kk == 0 and k == 0) else d)
    for st in range(NST):
        G.mark[st * 80] = 's%d' % st
    pre = []
    for P_ in range(NST * 20):
        rd = reads(P_)
        if P_ < LA: pre += rd; continue
        st, p = P_ // 20, P_ % 20
        for k, x in enumerate(rd):
            g = 4 * (P_ - LA) + k
            if p == 19: g -= (1, 2, 2, 3)[k]
            if p == 0: g += (2, 1, 1, 0)[k]
            if G.first[g] is None: G.add(g, x, 4, mem=True)
            else: G.add(g, x, 4)
    for P_ in range(1, NST * 20):
        G.add(4 * P_ - 1, ('WAIT', None, ('A', P_)), 4)
    for st in range(NST - 1):
        g = st * 80 + 4 * (20 - LA) + 1
        assert G.first[g] is None
        G.rest[g] += [('WAIT', ('L', st + 1), 0), N('s_barrier')]
    for st in range(2, NST + 2):
        lo = (st - 3) * 80 + 4 * (20 - LA) + 2 if st > 2 else 0
        hi = (st - 2) * 80 + 4 * (20 - LA)
        ls = loads(st); n = sum(1 for k, x in ls if k == 'mem'); j = 0; cur = lo
        if st >= NST + 1: continue
        for k, x in ls:
            if st == NST and cur >= 800: break
            if k == 'mem':
                cur = max(cur, lo + 2 + (j * (hi - lo - 4)) // n); j += 1
                if st == NST and cur >= 800: break
                G.rest[cur].append(x); cur += 1
            elif k == 'm0':
                G.rest[cur].append(x); cur += 1
            else:
                G.rest[cur].append(x)
    S.wait(vm=('L', 0)); S('s_barrier')
    for x in pre: put(S, x)
    S('s_mov_b32 s36, 3')
    S.wait(lg=('A', 0))
    G.emit(S)
    S.mark('end')
    for tb in range(2):
        for i in range(20): S('v_cvt_pk_bf16_f32 %s, %s, %s' % (v(tb * 40 + i), v(tb * 40 + 2 * i), v(tb * 40 + 2 * i + 1)))
        S('s_mov_b32 s30, %d\ns_mov_b32 s31, %d' % (tb * 20480, tb * 20480 + 4096))
        for j in range(5): S('buffer_store_dwordx4 %s, %s, s[16:19], %s offen offset:%d' % (v(tb * 40 + 4 * j, 4), v(V_L16), 's31' if j == 4 else 's30', 1024 * (j & 3)))
    S('L_oproj_end:\ns_endpgm')
    S.resolve(); S.autonop()
    errs = S.check(name)
    pos = fold(S, [('s%d' % (1 + 3 * k), 's%d' % (4 + 3 * k)) for k in range(3)])
    out = Stream()
    out.ins = S.ins[:pos['s1']]
    out('L_oproj_loop:')
    out.ins += S.ins[pos['s1']:pos['s4']]
    out('s_sub_u32 s36, s36, 1\ns_cmp_lg_u32 s36, 0\ns_cbranch_scc1 L_oproj_loop')
    out.ins += S.ins[pos['s10']:]
    return name, out.text(), kernel_desc(name, 112 + 144, 112), errs, 'grid=(256,1,1) block=(256,1,1) lds=%d' % (RING * STG)

if __name__ == '__main__':
    for k in ('g1', 'g2', 'g3', 'g4'):
        r = gen_ksplit(k); print(r[0], r[3][:5], r[4])
    r = gen_oproj(); print(r[0], r[3][:5], r[4])
```

```python
from asmlib import *
from layout import *
import struct
def f32(x): return '0x%08x' % struct.unpack('<I', struct.pack('<f', x))[0]
LOG2E = 1.4426950408889634

def srd(S, r, base, off, size):
    if off == 0: S('s_mov_b32 %s, %s\ns_mov_b32 %s, %s' % (s(r), s(base), s(r + 1), s(base + 1)))
    else: S('s_add_u32 %s, %s, %s\ns_addc_u32 %s, %s, 0' % (s(r), s(base), off, s(r + 1), s(base + 1)))
    S('s_mov_b32 %s, %s\ns_mov_b32 %s, 0x20000' % (s(r + 2), size, s(r + 3)))

def unpack(S, dst, src, n):
    for i in range(n):
        S('v_lshlrev_b32 %s, 16, %s' % (v(dst + 2 * i), v(src + i)))
        S('v_and_b32 %s, 0xffff0000, %s' % (v(dst + 2 * i + 1), v(src + i)))

def xsum(S, regs, tmp, steps, op='v_add_f32'):
    for st in steps:
        if st in (32, 16):
            for k, r in enumerate(regs): S('v_mov_b32 %s, %s' % (v(tmp + k), v(r)))
            for k, r in enumerate(regs): S('v_permlane%d_swap_b32 %s, %s' % (st, v(r), v(tmp + k)))
            for k, r in enumerate(regs): S('%s %s, %s, %s' % (op, v(r), v(r), v(tmp + k)))
        else:
            for k, r in enumerate(regs): S('%s_dpp %s, %s, %s row_ror:%d row_mask:0xf bank_mask:0xf' % (op, v(r), v(r), v(r), st))

def finish(name, S, vgpr, accum=None):
    S.resolve(); S.autonop()
    errs = S.check(name)
    return name, S.text(), kernel_desc(name, vgpr, accum or ((vgpr + 3) // 4 * 4)), errs

def gen_mod():
    name = 'mod_kernel'; S = Stream()
    S('s_cmp_ge_u32 s2, 256\ns_cbranch_scc1 L_mod_end')
    S('s_load_dwordx2 s[4:5], s[0:1], %d\ns_load_dwordx4 s[8:11], s[0:1], %d\ns_load_dwordx2 s[6:7], s[0:1], %d\ns_load_dwordx2 s[12:13], s[0:1], %d' % (KARG['wq'], KARG['c'], KARG['w3'], KARG['ws']))
    S('s_lshr_b32 s3, s2, 3\ns_lshl_b32 s3, s3, 9\nv_add_u32 v1, s3, v0')
    S('v_mul_u32_u24 v2, 43691, v1\nv_lshrrev_b32 v2, 20, v2')
    S('v_mul_u32_u24 v3, 24, v2\nv_sub_u32 v3, v1, v3\nv_lshlrev_b32 v3, 6, v3')
    S('v_mul_u32_u24 v2, 12288, v2\ns_and_b32 s3, s2, 7\ns_mul_i32 s3, s3, 1536\nv_add3_u32 v1, v2, v3, s3')
    S('v_and_b32 v4, 3, v0\nv_lshrrev_b32 v5, 2, v0')
    S('s_waitcnt lgkmcnt(0)')
    srd(S, 16, 4, 0, 640 * 12288)
    S('s_cmp_ge_u32 s2, 168\ns_cbranch_scc1 L_mod_touch')
    S('s_mov_b32 s14, 7680\ns_mov_b32 s28, %d\ns_mov_b32 s22, %d\ns_mov_b32 s23, 0x20000' % (WS_MOD, 640 * 7680))
    S('s_cmp_ge_u32 s2, 120\ns_cmov_b32 s14, 3072\ns_cselect_b32 s20, s6, s10\ns_cselect_b32 s21, s7, s11\ns_cselect_b32 s15, 120, 0\ns_cmov_b32 s28, %d\ns_cselect_b64 s[30:31], -1, 0\ns_cmov_b32 s22, %d' % (WS_CS3, 640 * 3072))
    S('s_sub_u32 s15, s2, s15')
    srd(S, 24, 8, 0, 1280)
    S('v_mul_lo_u32 v6, v5, s14\ns_lshl_b32 s29, s15, 6\nv_lshlrev_b32 v7, 4, v4\nv_add3_u32 v6, v6, v7, s29')
    S('s_lshl_b32 s14, s14, 7\ns_mov_b32 s33, 0\nv_lshlrev_b32 v7, 1, v5')
    for i in range(5):
        S('buffer_load_dwordx4 %s, v6, s[20:23], s33 offen' % v(8 + 4 * i, 4), tag='w')
        S('s_add_u32 s33, s33, s14')
    for i in range(5): S('buffer_load_ushort %s, v7, s[24:27], 0 offen offset:%d' % (v(28 + i), 256 * i), tag='c')
    S('buffer_load_dword v33, v1, s[16:19], 0 offen', tag='touch')
    S('s_lshl_b32 s29, s15, 7\ns_add_u32 s28, s28, s29')
    srd(S, 36, 12, 's28', 128)
    S.wait(vm='c')
    for i in range(5):
        c = 28 + i
        S('v_lshlrev_b32 %s, 16, %s' % (v(c), v(c)))
        S('v_mul_f32 v34, %s, %s' % (f32(-LOG2E), v(c)))
        S('v_exp_f32 v34, v34')
        S('v_add_f32 v34, 1.0, v34')
        S('v_rcp_f32 v34, v34')
        S('v_mul_f32 %s, %s, v34' % (v(c), v(c)))
        S('v_cvt_pk_bf16_f32 %s, %s, %s' % (v(c), v(c), v(c)))
        S('v_lshlrev_b32 %s, 16, %s' % (v(c), v(c)))
        S('v_cndmask_b32 %s, %s, 1.0, s[30:31]' % (v(c), v(c)))
    for i in range(5):
        unpack(S, 44, 8 + 4 * i, 4)
        for j in range(8):
            S(('v_mul_f32 %s, %s, %s' if i == 0 else 'v_fmac_f32 %s, %s, %s') % (v(36 + j), v(44 + j), v(28 + i)))
    xsum(S, list(range(36, 44)), 44, (32, 16, 8, 4))
    S('v_lshrrev_b32 v2, 6, v0\nv_lshlrev_b32 v2, 7, v2\nv_lshl_add_u32 v2, v4, 5, v2')
    S('ds_write_b128 v2, v[36:39]\nds_write_b128 v2, v[40:43] offset:16')
    S('v_and_b32 v3, 31, v0\nv_lshlrev_b32 v3, 2, v3')
    S('s_waitcnt lgkmcnt(0)\ns_barrier')
    for w in range(8): S('ds_read_b32 %s, v3 offset:%d' % (v(8 + w), 128 * w))
    S('s_waitcnt lgkmcnt(0)')
    for a_, b_ in ((8, 9), (10, 11), (12, 13), (14, 15), (8, 10), (12, 14), (8, 12)): S('v_add_f32 %s, %s, %s' % (v(a_), v(a_), v(b_)))
    S('v_cvt_pk_bf16_f32 v9, v8, v8\nv_lshlrev_b32 v9, 16, v9\nv_cndmask_b32 v8, v9, v8, s[30:31]')
    S('v_lshlrev_b32 v3, 2, v0')
    S('buffer_store_dword v8, v3, s[36:39], 0 offen')
    S('s_endpgm')
    S('L_mod_touch:')
    S('buffer_load_dword v35, v1, s[16:19], 0 offen')
    S('s_waitcnt vmcnt(0)')
    S('L_mod_end:\ns_endpgm')
    return finish(name, S, 56) + ('grid=(256,1,1) block=(512,1,1) lds=1024',)

def lane8(S):
    S('v_lshrrev_b32 v4, 6, v0\nv_and_b32 v1, 7, v0\nv_bfe_u32 v2, v0, 3, 2\nv_bfe_u32 v3, v0, 5, 1')
    S('v_lshl_add_u32 v3, v4, 2, v3')
    S('s_and_b32 s3, s2, 7\ns_lshl_b32 s3, s3, 5\ns_lshr_b32 s34, s2, 3\ns_add_u32 s3, s3, s34\ns_lshl_b32 s3, s3, 3')
    S('s_lshr_b32 s34, s3, 4\ns_mul_i32 s34, s34, 20480\ns_and_b32 s35, s3, 8\ns_lshl_b32 s35, s35, 4\ns_add_u32 s34, s34, s35')
    S('v_lshlrev_b32 v5, 10, v3\nv_lshl_add_u32 v5, v2, 8, v5\nv_lshl_add_u32 v5, v1, 4, v5\nv_add_u32 v5, s34, v5')
    S('v_lshlrev_b32 v7, 6, v1\nv_lshl_add_u32 v6, v4, 3, v7')

def stats(S, x, acc, tmp, ldsoff, tag):
    S('v_add_f32 %s, %s, %s' % (v(acc), v(x), v(x + 1)))
    S('v_mul_f32 %s, %s, %s' % (v(acc + 1), v(x), v(x)))
    S('v_add_f32 %s, %s, %s' % (v(tmp), v(x + 2), v(x + 3)))
    S('v_mul_f32 %s, %s, %s' % (v(tmp + 1), v(x + 1), v(x + 1)))
    for i in range(2, 16):
        if i >= 4: S('v_add_f32 %s, %s, %s' % (v((acc, tmp)[i & 1]), v((acc, tmp)[i & 1]), v(x + i)))
        S('v_fmac_f32 %s, %s, %s' % (v((acc, tmp)[i & 1] + 1), v(x + i), v(x + i)))
    S('v_add_f32 %s, %s, %s\nv_add_f32 %s, %s, %s' % (v(acc), v(acc), v(tmp), v(acc + 1), v(acc + 1), v(tmp + 1)))
    xsum(S, [acc, acc + 1], tmp, (32, 16, 8))
    S('ds_write_b64 v6, %s offset:%d' % (v(acc, 2), ldsoff))
    S('s_waitcnt lgkmcnt(0)\ns_barrier')
    S('ds_read_b128 %s, v7 offset:%d\nds_read_b128 %s, v7 offset:%d\nds_read_b64 %s, v7 offset:%d' % (v(tmp, 4), ldsoff, v(tmp + 4, 4), ldsoff + 16, v(tmp + 8, 2), ldsoff + 32))
    S('s_waitcnt lgkmcnt(0)')
    for k in range(2):
        S('v_add_f32 %s, %s, %s' % (v(tmp + k), v(tmp + k), v(tmp + 2 + k)))
        S('v_add_f32 %s, %s, %s' % (v(tmp + 4 + k), v(tmp + 4 + k), v(tmp + 6 + k)))
        S('v_add_f32 %s, %s, %s' % (v(tmp + k), v(tmp + k), v(tmp + 8 + k)))
        S('v_add_f32 %s, %s, %s' % (v(acc + k), v(tmp + k), v(tmp + 4 + k)))
    meanrstd(S, acc, tmp)

def meanrstd(S, acc, tmp):
    S('v_mul_f32 %s, %s, %s' % (v(acc), f32(1 / 640), v(acc)))
    S('v_mul_f32 %s, %s, %s' % (v(acc + 1), f32(1 / 640), v(acc + 1)))
    S('v_fma_f32 %s, -%s, %s, %s' % (v(acc + 1), v(acc), v(acc), v(acc + 1)))
    S('v_max_f32 %s, 0, %s' % (v(acc + 1), v(acc + 1)))
    S('v_add_f32 %s, %s, %s' % (v(acc + 1), f32(1e-5), v(acc + 1)))
    S('v_rsq_f32 %s, %s' % (v(acc + 1), v(acc + 1)))

def gen_ln1():
    name = 'ln1_kernel'; S = Stream()
    S('s_cmp_ge_u32 s2, 256\ns_cbranch_scc1 L_ln1_end')
    S('s_load_dwordx2 s[4:5], s[0:1], %d\ns_load_dwordx2 s[6:7], s[0:1], %d' % (KARG['x'], KARG['ws']))
    lane8(S)
    S('v_add_u32 v8, s3, v1\nv_mul_u32_u24 v8, 1280, v8\nv_lshlrev_b32 v9, 6, v3\nv_lshl_add_u32 v9, v2, 4, v9\nv_add_u32 v8, v8, v9\nv_lshlrev_b32 v9, 1, v9')
    S('s_waitcnt lgkmcnt(0)')
    srd(S, 8, 4, 0, ACT); srd(S, 12, 6, WS_MOD, 3840 * 4); srd(S, 16, 6, WS_H, ACT)
    for i in range(2): S('buffer_load_dwordx4 %s, v8, s[8:11], 0 offen offset:%d' % (v(10 + 4 * i, 4), 128 * i), tag='x')
    for a_ in range(2):
        for i in range(2):
            for h in range(2): S('buffer_load_dwordx4 %s, v9, s[12:15], 0 offen offset:%d' % (v(36 + 16 * a_ + 8 * i + 4 * h, 4), 2560 * a_ + 256 * i + 16 * h), tag='m')
    S.wait(vm='x')
    unpack(S, 20, 10, 8)
    stats(S, 20, 18, 68, 0, 'a')
    c = 192 ** -0.5 * LOG2E
    S('s_mov_b32 s36, %s' % f32(c))
    S('v_mul_f32 v18, v18, v19')
    S.wait(vm='m')
    for i in range(16):
        S('v_fma_f32 %s, %s, v19, -v18' % (v(20 + i), v(20 + i)))
        S('v_fma_f32 %s, %s, s36, s36' % (v(52 + i), v(52 + i)))
        S('v_mul_f32 %s, s36, %s' % (v(36 + i), v(36 + i)))
        S('v_fma_f32 %s, %s, %s, %s' % (v(20 + i), v(20 + i), v(52 + i), v(36 + i)))
    for i in range(8): S('v_cvt_pk_bf16_f32 %s, %s, %s' % (v(10 + i), v(20 + 2 * i), v(21 + 2 * i)))
    for i in range(2): S('buffer_store_dwordx4 %s, v5, s[16:19], 0 offen offset:%d' % (v(10 + 4 * i, 4), 2048 * i))
    S('L_ln1_end:\ns_endpgm')
    return finish(name, S, 80) + ('grid=(256,1,1) block=(320,1,1) lds=512',)

def gen_mid():
    name = 'mid_kernel'; S = Stream()
    S('s_cmp_ge_u32 s2, 256\ns_cbranch_scc1 L_mid_end')
    S('s_load_dwordx2 s[4:5], s[0:1], %d\ns_load_dwordx2 s[6:7], s[0:1], %d' % (KARG['x'], KARG['ws']))
    lane8(S)
    S('v_add_u32 v8, s3, v1\nv_mul_u32_u24 v8, 1280, v8\nv_lshlrev_b32 v9, 6, v3\nv_lshl_add_u32 v9, v2, 3, v9\nv_add_u32 v8, v8, v9\nv_lshlrev_b32 v9, 1, v9')
    S('s_waitcnt lgkmcnt(0)')
    srd(S, 12, 6, WS_PART, 4 * ACT); srd(S, 8, 4, 0, ACT); srd(S, 16, 6, WS_MOD, 3840 * 4); srd(S, 20, 6, WS_X, WS_HN - WS_X + ACT)
    S('s_mov_b32 s24, 0\ns_mov_b32 s25, %d\ns_mov_b32 s26, %d\ns_mov_b32 s27, %d' % (ACT, 2 * ACT, 3 * ACT))
    PB = 10
    for q in range(4):
        for i in range(2): S('buffer_load_dwordx4 %s, v5, s[12:15], %s offen offset:%d' % (v(PB + 8 * q + 4 * i, 4), s(24 + q), 2048 * i), tag=('p', q))
    XB = 42
    for i in range(2):
        for h in range(2): S('buffer_load_dwordx2 %s, v8, s[8:11], 0 offen offset:%d' % (v(XB + 4 * i + 2 * h, 2), 128 * i + 32 * h), tag='x')
    MB = 50
    for a_ in range(3):
        S('s_mov_b32 %s, %d' % (s(28 + a_), 2560 * (2 + a_)))
    for a_ in range(3):
        for i in range(2):
            for h in range(2): S('buffer_load_dwordx4 %s, v9, s[16:19], %s offen offset:%d' % (v(MB + 16 * a_ + 8 * i + 4 * h, 4), s(28 + a_), 256 * i + 64 * h), tag=('m', a_))
    A, Tm = 98, 114
    AC = 130
    S.wait(vm=('p', 0))
    unpack(S, A, PB, 8)
    for q in range(1, 4):
        S.wait(vm=('p', q))
        unpack(S, Tm, PB + 8 * q, 8)
        for i in range(16): S('v_add_f32 %s, %s, %s' % (v(A + i), v(A + i), v(Tm + i)))
    S.wait(vm=['x', ('m', 0)])
    unpack(S, Tm, XB, 8)
    for i in range(16): S('v_fma_f32 %s, %s, %s, %s' % (v(A + i), v(A + i), v(MB + i), v(Tm + i)))
    for i in range(8): S('v_cvt_pk_bf16_f32 %s, %s, %s' % (v(PB + i), v(A + 2 * i), v(A + 2 * i + 1)))
    unpack(S, A, PB, 8)
    for i in range(2): S('buffer_store_dwordx4 %s, v5, s[20:23], 0 offen offset:%d' % (v(PB + 4 * i, 4), 2048 * i))
    stats(S, A, AC, Tm, 0, 'a')
    S('v_mul_f32 %s, %s, %s' % (v(AC), v(AC), v(AC + 1)))
    S.wait(vm=('m', 2))
    for i in range(16):
        S('v_fma_f32 %s, %s, %s, -%s' % (v(A + i), v(A + i), v(AC + 1), v(AC)))
        S('v_add_f32 %s, 1.0, %s' % (v(MB + 32 + i), v(MB + 32 + i)))
        S('v_fma_f32 %s, %s, %s, %s' % (v(A + i), v(A + i), v(MB + 32 + i), v(MB + 16 + i)))
    for i in range(8): S('v_cvt_pk_bf16_f32 %s, %s, %s' % (v(PB + 8 + i), v(A + 2 * i), v(A + 2 * i + 1)))
    unpack(S, A, PB + 8, 8)
    S('s_mov_b32 s24, %d\ns_mov_b32 s25, %d' % (WS_H2 - WS_X, WS_HN - WS_X))
    for i in range(2): S('buffer_store_dwordx4 %s, v5, s[20:23], s24 offen offset:%d' % (v(PB + 8 + 4 * i, 4), 2048 * i))
    stats(S, A, AC, Tm, 512, 'b')
    S('v_mul_f32 %s, %s, %s' % (v(AC), v(AC), v(AC + 1)))
    for i in range(16): S('v_fma_f32 %s, %s, %s, -%s' % (v(A + i), v(A + i), v(AC + 1), v(AC)))
    for i in range(8): S('v_cvt_pk_bf16_f32 %s, %s, %s' % (v(PB + 16 + i), v(A + 2 * i), v(A + 2 * i + 1)))
    for i in range(2): S('buffer_store_dwordx4 %s, v5, s[20:23], s25 offen offset:%d' % (v(PB + 16 + 4 * i, 4), 2048 * i))
    S('L_mid_end:\ns_endpgm')
    return finish(name, S, 136) + ('grid=(256,1,1) block=(320,1,1) lds=1024',)

if __name__ == '__main__':
    for g in (gen_mod, gen_ln1, gen_mid):
        r = g(); print(r[0], r[3])
```

```python
WS_MOD  = 0x0
WS_CS3  = 0x4000
WS_ST   = 0x8000
WS_H    = 0x40000
WS_O    = 0x400000
WS_PART = 0x2000000
WS_X    = 0x3000000
WS_H2   = 0x3300000
WS_HN   = 0x3600000
WS_G    = 0x3900000
WS_X1   = 0x3C00000
WS_U    = 0x4000000
WS_STAMP= 0xF000000
ACT = 2048 * 640 * 2
KARG = dict(x=0, k=8, v=16, wq=24, wo=32, bx=40, w1=48, w2=56, w3=64, w4=72, c=80, wmod=88, out=96, dbg=104, ws=112)
```

```python
import sys
from asmlib import *
import gen_small, gen_gemm, gen_attn16
def build(opts=None, stamp=False):
    opts = opts or {}
    ks = [gen_small.gen_mod(), gen_small.gen_ln1()]
    n, text, desc, lds, errs = gen_attn16.gen(stamp=stamp, opts=opts.get('attn'), **({'thr': opts['thr']} if 'thr' in opts else {}))
    ks.append((n, text, desc, errs, 'grid=(256,1,1) block=(256,1,1) lds=%d' % lds))
    ks += [gen_gemm.gen_oproj(), gen_small.gen_mid()] + [gen_gemm.gen_ksplit(k) for k in ('g1', 'g2', 'g3', 'g4')]
    ref = open('adaLN_cond__mha_block_cached__mixer_s_mlp__prompt.s.ref').read().split('\n')
    head = [l for l in ref if l.startswith(';') and '@launch' not in l and 'Override' not in l and 'grid=ceil' not in l]
    out = '\n'.join(head) + '\n'
    for k in ks:
        assert not k[3], k[3][:5]
        out += '; @launch kernel=%s %s\n' % (k[0], k[4])
    out += '.amdgcn_target "amdgcn-amd-amdhsa--gfx950"\n.text\n'
    for k in ks: out += kernel_head(k[0]) + k[1]
    out += '.section .rodata,"a"\n'
    for k in ks: out += '.p2align 6\n' + k[2]
    return out
if __name__ == '__main__':
    fn = sys.argv[1] if len(sys.argv) > 1 else 'adaLN_cond__mha_block_cached__mixer_s_mlp__prompt.s'
    opts = eval(sys.argv[2]) if len(sys.argv) > 2 else {}
    open(fn, 'w').write(build(opts))
    print('written', fn)
```

```python
import sys
from asmlib import *
import gen_small, gen_gemm, gen_attn16
def build(opts=None, stamp=False):
    opts = opts or {}
    ks = [gen_small.gen_mod(), gen_small.gen_ln1()]
    n, text, desc, lds, errs = gen_attn16.gen(stamp=stamp, opts=opts.get('attn'), **({'thr': opts['thr']} if 'thr' in opts else {}))
    ks.append((n, text, desc, errs, 'grid=(256,1,1) block=(256,1,1) lds=%d' % lds))
    ks += [gen_gemm.gen_oproj(), gen_small.gen_mid()] + [gen_gemm.gen_ksplit(k) for k in ('g1', 'g2', 'g3', 'g4')]
    ref = open('adaLN_cond__mha_block_cached__mixer_s_mlp__prompt.s.ref').read().split('\n')
    head = [l for l in ref if l.startswith(';') and '@launch' not in l and 'Override' not in l and 'grid=ceil' not in l]
    out = '\n'.join(head) + '\n'
    if opts.get('empty'):
        ks.append(('nop_kernel', '    s_endpgm\n', kernel_desc('nop_kernel', 8, 8), [], 'grid=(256,1,1) block=(256,1,1) lds=0'))
    order = opts.get('order', list(range(9)))
    for k in ks: assert not k[3], k[3][:5]
    for i in order:
        k = ks[i]
        out += '; @launch kernel=%s %s\n' % (k[0], k[4])
    out += '.amdgcn_target "amdgcn-amd-amdhsa--gfx950"\n.text\n'
    for k in ks: out += kernel_head(k[0]) + k[1]
    out += '.section .rodata,"a"\n'
    for k in ks: out += '.p2align 6\n' + k[2]
    return out
if __name__ == '__main__':
    fn = sys.argv[1] if len(sys.argv) > 1 else 'adaLN_cond__mha_block_cached__mixer_s_mlp__prompt.s'
    opts = eval(sys.argv[2]) if len(sys.argv) > 2 else {}
    open(fn, 'w').write(build(opts))
    print('written', fn)
```

```python
import re

REG_RE = re.compile(r'(?<![\w.])([vas])(?:\[(\d+):(\d+)\]|(\d+))(?![\w])')

def regs_of(op):
    out = []
    for m in REG_RE.finditer(op):
        k = m.group(1)
        if m.group(2) is not None:
            out += [(k, i) for i in range(int(m.group(2)), int(m.group(3)) + 1)]
        else:
            out.append((k, int(m.group(4))))
    if re.search(r'\bvcc\b', op): out += [('s', 106), ('s', 107)]
    if re.search(r'\bm0\b', op): out.append(('s', 124))
    if re.search(r'\bexec\b', op): out += [('s', 126), ('s', 127)]
    return out

TRANS = ('v_exp_f32', 'v_log_f32', 'v_rcp_f32', 'v_rsq_f32', 'v_sqrt_f32', 'v_sin_f32', 'v_cos_f32')

def split_ops(s):
    ops, depth, cur = [], 0, ''
    for ch in s:
        if ch == '[': depth += 1
        if ch == ']': depth -= 1
        if ch == ',' and depth == 0:
            ops.append(cur.strip()); cur = ''
        else:
            cur += ch
    if cur.strip(): ops.append(cur.strip())
    return ops

class Ins:
    __slots__ = ('text', 'tag', 'kind', 'op', 'dst', 'src', 'srcC', 'states', 'passes', 'wait', 'lds_dma', 'wide_store')
    def __init__(self, text, tag=None):
        self.text = text; self.tag = tag; self.wait = None
        self.parse()
    def parse(self):
        t = self.text.split(';')[0].strip()
        self.dst = []; self.src = []; self.srcC = []; self.states = 1; self.passes = 0
        self.lds_dma = False; self.wide_store = False
        if not t or t.startswith('.') or t.endswith(':'):
            self.kind = 'none'; self.op = t; self.states = 0; return
        parts = t.split(None, 1)
        op = parts[0]; self.op = op
        rest = parts[1] if len(parts) > 1 else ''
        ops = split_ops(rest)
        R = regs_of
        if op.startswith('v_mfma'):
            self.kind = 'mfma'; self.dst = R(ops[0]); self.src = R(ops[1]) + R(ops[2]); self.srcC = R(ops[3])
            self.passes = 8 if '32x32' in op else 4
        elif op.startswith('ds_'):
            self.kind = 'ds'
            if op.startswith('ds_read') or op.startswith('ds_bpermute') or op.startswith('ds_swizzle'):
                self.dst = R(ops[0]); self.src = sum((R(o) for o in ops[1:]), [])
            else:
                self.src = sum((R(o) for o in ops), [])
        elif op.startswith('buffer_') or op.startswith('global_'):
            self.kind = 'vm'
            if op in ('buffer_inv', 'buffer_wbl2'):
                pass
            elif re.search(r'\blds\b', rest) or 'load_lds' in op:
                self.lds_dma = True; self.src = sum((R(o) for o in ops), []) + [('s', 124)]
            elif 'load' in op:
                self.dst = R(ops[0]); self.src = sum((R(o) for o in ops[1:]), [])
            elif 'atomic' in op and ' sc0' in rest:
                if op.startswith('buffer_'):
                    self.dst = R(ops[0]); self.src = sum((R(o) for o in ops), [])
                else:
                    self.dst = R(ops[0]); self.src = sum((R(o) for o in ops[1:]), [])
            else:
                self.src = sum((R(o) for o in ops), [])
                if 'x4' in op or 'x3' in op:
                    self.wide_store = R(ops[0]) if op.startswith('buffer_') else R(ops[1])
        elif op.startswith('s_'):
            if op.startswith('s_load') or op in ('s_memtime', 's_memrealtime'):
                self.kind = 'smem'; self.dst = R(ops[0]); self.src = sum((R(o) for o in ops[1:]), [])
            elif op == 's_nop':
                self.kind = 'nop'; self.states = int(ops[0], 0) + 1
            elif op == 's_waitcnt':
                self.kind = 'wait'
            elif op in ('s_barrier', 's_endpgm', 's_setprio', 's_sleep') or op.startswith('s_cbranch') or op == 's_branch':
                self.kind = 'ctl'
            elif op.startswith('s_cmp') or op.startswith('s_bitcmp'):
                self.kind = 'salu'; self.src = sum((R(o) for o in ops), [])
            else:
                self.kind = 'salu'; self.dst = R(ops[0]); self.src = sum((R(o) for o in ops[1:]), [])
                if 'saveexec' in op: self.dst += [('s', 126), ('s', 127)]
                if op in ('s_addk_i32', 's_mulk_i32', 's_cmov_b32', 's_cmov_b64'): self.src += self.dst
        elif op.startswith('v_'):
            self.kind = 'valu'
            base = op.replace('_e32', '').replace('_e64', '').replace('_dpp', '')
            if base.startswith('v_cmp'):
                self.dst = R(ops[0]); self.src = sum((R(o) for o in ops[1:]), [])
                if base.startswith('v_cmpx'): self.dst += [('s', 126), ('s', 127)]
            elif base in ('v_add_co_u32', 'v_addc_co_u32', 'v_sub_co_u32', 'v_subb_co_u32', 'v_div_scale_f32', 'v_mad_u64_u32'):
                self.dst = R(ops[0]) + R(ops[1]); self.src = sum((R(o) for o in ops[2:]), [])
            elif base.startswith('v_permlane') and 'swap' in base:
                self.dst = R(ops[0]) + R(ops[1]); self.src = list(self.dst)
            elif base == 'v_nop':
                pass
            else:
                self.dst = R(ops[0]); self.src = sum((R(o) for o in ops[1:]), [])
                if base in ('v_fmac_f32', 'v_pk_fmac_f16', 'v_dot2c_f32_bf16', 'v_writelane_b32') or 'dpp' in op or 'row_' in rest or 'quad_perm' in rest:
                    self.src += self.dst
                if base == 'v_div_fmas_f32': self.src += [('s', 106), ('s', 107)]
        else:
            raise ValueError('unparsed: ' + t)
    def is_trans(self): return self.op.replace('_e32', '').replace('_e64', '') in TRANS
    def is_dpp(self): return 'dpp' in self.op or 'row_' in self.text or 'quad_perm' in self.text

STAMPS = [False]
class Stream:
    def stamp(self, i):
        if STAMPS[0]: self('s_memtime s[%d:%d]' % (64 + 2 * i, 65 + 2 * i), 'stamp')
    def __init__(self):
        self.ins = []
    def __call__(self, text, tag=None):
        for line in text.split('\n'):
            line = line.strip()
            if line: self.ins.append(Ins(line, tag))
    def mark(self, name):
        i = Ins('; MARK ' + name); i.kind = 'mark'; i.op = name; self.ins.append(i)
    def wait(self, vm=None, lg=None):
        i = Ins('s_waitcnt ?'); i.wait = (vm, lg); self.ins.append(i)
    def extend(self, other): self.ins += other.ins

    def resolve(self):
        vm_seq, lg_seq = [], []
        for i in self.ins:
            if i.wait is not None:
                vm, lg = i.wait
                parts = []
                def cnt(seq, tags, mx):
                    if isinstance(tags, int): return tags
                    if not isinstance(tags, (list, set)): tags = [tags]
                    last = -1
                    for t in tags:
                        idx = [k for k, x in enumerate(seq) if x == t]
                        assert idx, 'wait on unknown tag %r' % (t,)
                        last = max(last, idx[-1])
                    return min(len(seq) - 1 - last, mx)
                if vm is not None: parts.append('vmcnt(%d)' % cnt(vm_seq, vm, 63))
                if lg is not None: parts.append('lgkmcnt(%d)' % cnt(lg_seq, lg, 15))
                i.text = 's_waitcnt ' + ' '.join(parts); i.wait = None
                i.parse()
            elif i.kind == 'vm': vm_seq.append(i.tag)
            elif i.kind == 'ds': lg_seq.append(i.tag)
            elif i.kind == 'smem' and i.tag != 'stamp': lg_seq.append('smem'); lg_seq.append('smem')
        return self

    def check(self, name=''):
        errs = []
        seq = [i for i in self.ins if i.kind not in ('none', 'mark')]
        vmq, lgq = [], []
        n = len(seq)
        for k, c in enumerate(seq):
            touched = set(c.src) | set(c.dst) | set(c.srcC)
            if c.kind == 'wait':
                m = re.search(r'vmcnt\((\d+)\)', c.text)
                if m:
                    N = int(m.group(1)); vmq = vmq[len(vmq) - N:] if N < len(vmq) and N > 0 else ([] if N == 0 else vmq)
                m = re.search(r'lgkmcnt\((\d+)\)', c.text)
                if m:
                    N = int(m.group(1))
                    if N == 0: lgq = []
                    elif not any(x[1] for x in lgq) and N < len(lgq): lgq = lgq[len(lgq) - N:]
                continue
            for q, nm in ((vmq, 'vm'), (lgq, 'lgkm')):
                for x in q:
                    if touched & x[0]:
                        errs.append('%s: pending %s load regs %s touched by [%s] (load: %s)' % (name, nm, sorted(touched & x[0])[:4], c.text, x[2]))
            if c.kind == 'vm':
                vmq.append((set(c.dst), False, c.text))
                if len(vmq) > 63: errs.append('%s: vmcnt overflow at %s' % (name, c.text))
            if c.kind == 'ds': lgq.append((set(c.dst), False, c.text))
            if c.kind == 'smem' and c.tag != 'stamp': lgq.append((set(c.dst), True, c.text))
            dist = 0
            j = k - 1
            while j >= 0 and dist < 20:
                p = seq[j]
                need = hazard(p, c)
                if need > dist:
                    errs.append('%s: hazard need %d have %d: [%s] -> [%s]' % (name, need, dist, p.text, c.text))
                dist += p.states
                j -= 1
        return errs

    def autonop(self):
        out = []; n = 0
        for c in self.ins:
            if c.kind not in ('none', 'mark', 'wait', 'nop'):
                dist = 0; short = 0
                for p in reversed(out):
                    if dist >= 20: break
                    if p.kind in ('none', 'mark'): continue
                    short = max(short, hazard(p, c) - dist)
                    dist += p.states
                if short > 0:
                    out.append(Ins('s_nop %d' % (short - 1))); n += 1
            out.append(c)
        self.ins = out
        return n

    def text(self):
        return '\n'.join(('    ' + i.text if i.kind not in ('none',) else i.text) for i in self.ins if i.kind != 'mark') + '\n'

def vregs(l): return {r for r in l if r[0] in 'va'}
def sregs(l): return {r for r in l if r[0] == 's'}

def hazard(p, c):
    need = 0
    pd = set(p.dst)
    if p.kind == 'valu':
        pv, ps = vregs(pd), sregs(pd)
        if c.kind == 'mfma' and pv & (set(c.src) | set(c.srcC)): need = max(need, 2)
        if c.kind == 'valu':
            if p.is_trans() and not c.is_trans() and pv & set(c.src): need = max(need, 1)
            if c.op.startswith('v_permlane') and pv & set(c.src): need = max(need, 2)
            if c.is_dpp() and pv & set(c.src): need = max(need, 2)
            if (c.op.startswith('v_readlane') or c.op.startswith('v_readfirstlane')) and pv & set(c.src): need = max(need, 1)
            if ps & set(c.src): need = max(need, 4 if ('lane' in c.op or 'div_fmas' in c.op) else 2)
            if ('s', 126) in ps:
                if c.is_dpp(): need = max(need, 5)
                if 'lane' in c.op: need = max(need, 4)
        if c.kind == 'vm' and ps & set(c.src): need = max(need, 5)
        if c.kind == 'mfma' and ('s', 126) in ps: need = max(need, 4)
        if c.kind in ('salu', 'smem') and ps & set(c.src): need = max(need, 1)
    if p.kind == 'mfma':
        t = {8: (12, 10, 7), 4: (8, 6, 3)}[p.passes]
        if c.kind == 'mfma':
            if pd & set(c.src): need = max(need, t[0])
            if pd & set(c.srcC) and not (set(c.srcC) == pd and c.passes == p.passes): need = max(need, t[1])
            if pd & set(c.dst) and set(c.srcC) != pd: need = max(need, t[1])
        elif c.kind in ('valu', 'vm', 'ds'):
            if pd & (set(c.src) | set(c.dst)): need = max(need, t[0])
            if c.kind == 'valu' and set(p.srcC) & set(c.dst): need = max(need, t[2])
    if p.kind == 'salu' and ('s', 124) in pd and (c.lds_dma or 'addtid' in c.op): need = max(need, 1)
    if p.kind == 'vm' and p.wide_store and set(p.wide_store) & set(c.dst):
        need = max(need, 2 if c.kind in ('valu', 'mfma') else 1)
    return need

def fold(stream, groups):
    pos = {i.op: k for k, i in enumerate(stream.ins) if i.kind == 'mark'}
    def body(a, b): return [i for i in stream.ins[pos[a]:pos[b]] if i.kind != 'mark']
    ref = body(*groups[0])
    for g in groups[1:]:
        x = body(*g)
        for u, w in zip(ref, x):
            if u.text == w.text: continue
            if u.kind == 'wait' and w.kind == 'wait' and re.sub(r'\d+', '', u.text) == re.sub(r'\d+', '', w.text):
                nums = [min(int(p), int(q)) for p, q in zip(re.findall(r'\d+', u.text), re.findall(r'\d+', w.text))]
                it = iter(nums)
                u.text = re.sub(r'\d+', lambda m_: str(next(it)), u.text)
                continue
            raise AssertionError('fold mismatch %s: %s vs %s' % (g, u.text, w.text))
        assert len(ref) == len(x), 'fold length mismatch %s %d %d' % (g, len(ref), len(x))
    return pos

def v(a, n=1): return 'v%d' % a if n == 1 else 'v[%d:%d]' % (a, a + n - 1)
def a(a_, n=1): return 'a%d' % a_ if n == 1 else 'a[%d:%d]' % (a_, a_ + n - 1)
def s(a_, n=1): return 's%d' % a_ if n == 1 else 's[%d:%d]' % (a_, a_ + n - 1)

def kernel_head(name):
    return '.globl %s\n.p2align 8\n.type %s,@function\n%s:\n' % (name, name, name)

def kernel_desc(name, vgpr, accum, sgpr=96):
    return ('.amdhsa_kernel %s\n  .amdhsa_next_free_vgpr %d\n  .amdhsa_next_free_sgpr %d\n  .amdhsa_accum_offset %d\n'
            '  .amdhsa_group_segment_fixed_size 0\n  .amdhsa_kernarg_size 120\n  .amdhsa_user_sgpr_count 2\n'
            '  .amdhsa_user_sgpr_kernarg_segment_ptr 1\n  .amdhsa_system_sgpr_workgroup_id_x 1\n'
            '.end_amdhsa_kernel\n' % (name, vgpr, sgpr, accum))
```

```python
from asmlib import *
from layout import *

TILE = 12288
SLOT = 2 * TILE
KSLOT = [0, SLOT, 2 * SLOT]
VSLOT = [3 * SLOT, 4 * SLOT, 5 * SLOT]
FLAG_OFF = 6 * SLOT
LDS_BYTES = 6 * SLOT + 64
RING = [VSLOT[0], KSLOT[2], VSLOT[1], VSLOT[2], KSLOT[0], KSLOT[1]]

V_S = 96; V_TMP16 = 112; V_P = 128; V_NEGM = 192
V_WA = 192; V_OFFW = 198; V_HOFF = 201
V_KA = 208; V_VA = 210; V_KA0 = 214; V_VA0 = 216
V_OFFK = 220; V_OFFV = 223
V_L = 226; V_M = 230; V_L16 = 234; V_L16B = 235; V_T = 236
A_KF = 192; A_VF = 216
S_K, S_V, S_W, S_H, S_O = 4, 8, 12, 16, 20
S_WAVE, S_WB, S_KOFF, S_VOFF, S_CNT, S_PASS, S_WOFF, S_HOFF = 24, 25, 26, 27, 28, 29, 30, 31
S_KR, S_KD, S_VR, S_VD = 44, 45, 46, 47
S_TS_, S_TD, S_RS, S_RD, S_RSO, S_RDO = 40, 56, 48, 49, 60, 61
V_RT = 255; A_RT = 240

def QA(db, qb): return (((db >> 1) * 4 + qb) * 2 + (db & 1)) * 4
def Q(qb, ks): return (ks * 4 + qb) * 4
def OA(db, qb): return (db * 4 + qb) * 4
def SR(qb): return V_S + 4 * qb
def P(pb, kh, qb): return V_P + ((pb * 2 + kh) * 4 + qb) * 4
MF = 'v_mfma_f32_16x16x32_bf16'

def dma_tile(kind, m0expr, tag, wrap=0):
    srd, off, vo, step = {'K': (S_K, S_KOFF, V_OFFK, TILE), 'V': (S_V, S_VOFF, V_OFFV, TILE), 'W': (S_W, S_WOFF, V_OFFW, 32 * 12288)}[kind]
    m0 = ('s_add_u32 m0, %s, %d' % m0expr, None)
    lds = [('buffer_load_dwordx4 %s, %s, %s offen offset:%d lds' % (v(vo + i), s(srd, 4), s(off), 1024 * i), tag) for i in range(3)]
    adv = ('s_add_u32 %s, %s, %d' % (s(off), s(off), step), None)
    if wrap: adv = (adv[0] + '\ns_cmp_eq_u32 %s, %d\ns_cmov_b32 %s, 0' % (s(off), wrap, s(off)), None)
    return m0, lds, adv

def put(S, x):
    if x is None: return
    if x[0] == 'WAIT': S.wait(vm=x[1], lg=x[2])
    elif x[0] == 'MARK': S.mark(x[1])
    else: S(x[0], x[1])

def put_tile(S, t):
    put(S, t[0]); S('s_nop 0')
    for x in t[1]: put(S, x)
    put(S, t[2])

class Gaps:
    def __init__(self, n, base=0, budget=8):
        self.n = n; self.base = base; self.budget = budget
        self.mf = [None] * n; self.first = [None] * n; self.rest = [[] for _ in range(n)]; self.cost = [0] * n
        self.mark = {}
    def fits(self, g, cost, mem):
        i = g - self.base
        if mem and self.first[i] is not None: return False
        return self.cost[i] + cost <= self.budget
    def add(self, g, items, cost, mem=False):
        i = g - self.base
        if not isinstance(items, list): items = [items]
        if mem:
            assert self.first[i] is None, ('two memory ops in gap', g)
            self.first[i] = items[0]; items = items[1:]
        self.rest[i] += items; self.cost[i] += cost
    def place(self, items, lo, hi, cost=4, mem=False, half=0):
        for g in range(lo, min(hi, lo + half) + 1):
            if half and self.cost[g - self.base] > 0 and self.fits(g, cost, mem):
                self.add(g, items, cost, mem); return g
        for g in range(lo, hi + 1):
            if self.fits(g, cost, mem):
                self.add(g, items, cost, mem); return g
        raise AssertionError('no slot for %s in [%d,%d]' % (items, lo, hi))
    def emit(self, S, lo=None, hi=None):
        for g in range(self.base if lo is None else lo, self.base + self.n if hi is None else hi):
            i = g - self.base
            if g in self.mark: S.mark(self.mark[g])
            if self.mf[i]: S(self.mf[i])
            elif self.rest[i] or self.first[i]: S('s_nop 0')
            put(S, self.first[i])
            for x in self.rest[i]: put(S, x)

def gen(thr=0x53800000, opts=None):
    opts = opts or {}
    S = Stream()
    name = 'attn_kernel'
    S('s_cmp_ge_u32 s2, 256\ns_cbranch_scc1 L_attn_end')
    S('s_load_dwordx4 s[32:35], s[0:1], %d' % KARG['k'])
    S('s_load_dwordx2 s[36:37], s[0:1], %d' % KARG['wq'])
    S('s_load_dwordx2 s[38:39], s[0:1], %d' % KARG['ws'])
    T = V_T
    S('v_lshrrev_b32 %s, 6, v0' % v(T))
    S('v_and_b32 %s, 63, v0' % v(T + 1))
    S('v_readfirstlane_b32 %s, %s' % (s(S_WAVE), v(T)))
    L = T + 1
    S('v_lshlrev_b32 %s, 4, %s' % (v(V_L16), v(L)))
    S('s_and_b32 s3, s2, 7\ns_lshl_b32 s3, s3, 2\ns_lshr_b32 s50, s2, 3\ns_and_b32 s51, s50, 3\ns_add_u32 s3, s3, s51\ns_lshr_b32 s50, s50, 2')
    S('s_mul_i32 %s, %s, 3072' % (s(S_WB), s(S_WAVE)))
    S('s_lshl_b32 s52, %s, 3' % s(S_WAVE))
    rows = []
    for i in range(3):
        n, p, c = T + 2, T + 4 + 2 * i, T + 3
        r = T + 5 + 2 * i
        S('v_add_u32 %s, %d, %s' % (v(n), 64 * i, v(L)))
        S('v_mul_u32_u24 %s, 2731, %s' % (v(r), v(n)))
        S('v_lshrrev_b32 %s, 16, %s' % (v(r), v(r)))
        S('v_mul_u32_u24 %s, 24, %s' % (v(p), v(r)))
        S('v_sub_u32 %s, %s, %s' % (v(p), v(n), v(p)))
        S('v_add_u32 %s, s52, %s' % (v(r), v(r)))
        S('v_bfe_u32 %s, %s, 1, 1' % (v(c), v(r)))
        S('v_lshlrev_b32 %s, 2, %s' % (v(c), v(c)))
        S('v_xor_b32 %s, %s, %s' % (v(c), v(c), v(p)))
        S('v_lshlrev_b32 %s, 4, %s' % (v(c), v(c)))
        S('v_subrev_u32 %s, %d, %s' % (v(c), 1024 * i, v(c)))
        S('v_mul_u32_u24 %s, 12288, %s' % (v(n), v(r)))
        S('v_add_u32 %s, %s, %s' % (v(V_OFFW + i), v(n), v(c)))
        rows.append((r, p))
    for qb in range(4): S('v_add_u32 %s, %d, %s' % (v(V_HOFF + qb), qb * 20480, v(V_L16)))
    S('s_waitcnt lgkmcnt(0)')
    S('s_mul_i32 s51, s3, 384')
    S('s_add_u32 %s, s36, s51\ns_addc_u32 %s, s37, 0\ns_sub_u32 %s, %d, s51\ns_mov_b32 %s, 0x20000' % (s(S_W), s(S_W + 1), s(S_W + 2), 640 * 12288, s(S_W + 3)))
    S('s_lshl_b32 s52, s50, 2\ns_add_u32 s52, s52, %s\ns_lshl_b32 s52, s52, 2' % s(S_WAVE))
    S('s_mul_i32 s51, s52, 20480\ns_add_u32 s51, s51, %d' % WS_H)
    S('s_add_u32 %s, s38, s51\ns_addc_u32 %s, s39, 0\ns_mov_b32 %s, 81920\ns_mov_b32 %s, 0x20000' % (s(S_H), s(S_H + 1), s(S_H + 2), s(S_H + 3)))
    S('s_mov_b32 %s, 0\ns_mov_b32 %s, 0\ns_mov_b32 %s, 0\ns_mov_b32 %s, 0\ns_mov_b32 %s, 0' % (s(S_WOFF), s(S_KOFF), s(S_VOFF), s(S_PASS), s(S_HOFF)))
    sg = opts.get('stag')
    if sg:
        S('s_lshr_b32 s51, s2, 3\ns_and_b32 s51, s51, 3')
        if sg == 5:
            S('s_add_u32 s51, s51, s50\ns_mul_i32 s53, s51, 52\ns_lshr_b32 s53, s53, 8\ns_mul_i32 s53, s53, 5\ns_sub_u32 s51, s51, s53')
        elif sg == 2:
            S('s_add_u32 s51, s51, s50\ns_and_b32 s51, s51, 1\ns_mul_i32 s51, s51, %d' % opts.get('stagd', 2))
        elif sg == 3:
            S('s_add_u32 s51, s51, s50\ns_mul_i32 s53, s51, 86\ns_lshr_b32 s53, s53, 8\ns_mul_i32 s53, s53, 3\ns_sub_u32 s51, s51, s53\ns_lshl_b32 s51, s51, 1\ns_min_u32 s51, s51, 3')
        S('s_mul_i32 %s, s51, %d\ns_lshl_b32 %s, s51, 12' % (s(S_WOFF), 128 * 12288, s(S_HOFF)))

    def hreg(st, ks, qb): return ((st % 6) * 8 + ks * 4 + qb) * 4
    def hloads(st):
        g = [('buffer_load_dwordx4 %s, %s, %s, %s offen offset:%d' % (a(hreg(st, ks, qb), 4), v(V_HOFF + qb), s(S_H, 4), s(S_HOFF), 1024 * ((st & 1) * 2 + ks)), ('H', st))
             for ks in range(2) for qb in range(4)]
        if opts.get('noh'): g = g[:1]
        adv = ('s_add_u32 %s, %s, 4096' % (s(S_HOFF), s(S_HOFF)), None) if st & 1 else None
        if adv and opts.get('stag'): adv = (adv[0] + '\ns_cmp_eq_u32 %s, 20480\ns_cmov_b32 %s, 0' % (s(S_HOFF), s(S_HOFF)), None)
        return (None, g, adv)
    def elem(e):
        base = RING[e % 6]
        kind, tag = ('W', ('E', e)) if e < 10 else {10: ('K', ('K', 0)), 11: ('K', ('K', 1)), 12: ('V', ('V', 0)), 13: ('K', ('K', 2)), 14: ('V', ('V', 1))}[e]
        r_ = [dma_tile(kind, (s(S_WB), base + h * TILE), tag, wrap=(640 * 12288 if (e < 9 and e % 2 == 1 and h == 1 and opts.get('stag')) else 0)) for h in range(2)]
        if opts.get('now') and e < 10: r_ = [(r_[0][0], r_[0][1][:1], r_[0][2])]
        return r_
    def burst(ts):
        for t in ts:
            if t[0] is not None: put(S, t[0]); S('s_nop 0')
            for x in t[1]: put(S, x)
            put(S, t[2])
    NB = opts.get('burst', 1)
    for e in range(NB): burst(elem(e) + [hloads(e)])
    if opts.get('codepf', True):
        S('s_getpc_b64 s[54:55]\nL_attn_pc:')
        S('v_lshlrev_b32 %s, 6, v0' % v(T + 2))
        for i in range(3):
            S('v_min_u32 %s, L_attn_end-L_attn_pc, %s' % (v(T + 3), v(T + 2)))
            S('global_load_dword %s, %s, s[54:55]' % (v(T + 16 + i), v(T + 3)), tag='code')
            if i < 2: S('v_add_u32 %s, 16384, %s' % (v(T + 2), v(T + 2)))
    S('s_mul_i32 s51, s3, 786432')
    S('s_add_u32 %s, s32, s51\ns_addc_u32 %s, s33, 0\ns_mov_b32 %s, 786432\ns_mov_b32 %s, 0x20000' % (s(S_K), s(S_K + 1), s(S_K + 2), s(S_K + 3)))
    S('s_add_u32 %s, s34, s51\ns_addc_u32 %s, s35, 0\ns_mov_b32 %s, 786432\ns_mov_b32 %s, 0x20000' % (s(S_V), s(S_V + 1), s(S_V + 2), s(S_V + 3)))
    S('s_mul_i32 s51, s52, %d\ns_mul_i32 s53, s3, 6144\ns_add_u32 s51, s51, s53\ns_add_u32 s51, s51, %d' % (192 * 1024, WS_O))
    S('s_add_u32 %s, s38, s51\ns_addc_u32 %s, s39, 0\ns_mov_b32 %s, %d\ns_mov_b32 %s, 0x20000' % (s(S_O), s(S_O + 1), s(S_O + 2), 3 * 192 * 1024 + 6144, s(S_O + 3)))
    for i, (r, p) in enumerate(rows):
        n, c = T + 2, T + 3
        S('v_mul_u32_u24 %s, 384, %s' % (v(n), v(r)))
        S('v_subrev_u32 %s, %d, %s' % (v(n), 1024 * i, v(n)))
        S('v_bfe_u32 %s, %s, 1, 2' % (v(c), v(r)))
        S('v_lshlrev_b32 %s, 1, %s' % (v(c), v(c)))
        S('v_xor_b32 %s, %s, %s' % (v(c), v(c), v(p)))
        S('v_lshl_add_u32 %s, %s, 4, %s' % (v(V_OFFV + i), v(c), v(n)))
        S('v_bfe_u32 %s, %s, 1, 3' % (v(c), v(r)))
        S('v_xor_b32 %s, %s, %s' % (v(c), v(c), v(p)))
        S('v_lshl_add_u32 %s, %s, 4, %s' % (v(V_OFFK + i), v(c), v(n)))
    S('v_add_u32 %s, 4096, %s' % (v(V_L16B), v(V_L16)))
    key, g_, f, t = T + 2, T + 3, T + 4, T + 5
    S('v_and_b32 %s, 15, %s' % (v(key), v(L)))
    S('v_lshrrev_b32 %s, 4, %s' % (v(g_), v(L)))
    S('v_lshrrev_b32 %s, 1, %s' % (v(f), v(key)))
    S('v_mul_u32_u24 %s, 384, %s' % (v(key), v(key)))
    for par in range(2):
        S('v_add_u32 %s, %d, %s' % (v(t), 4 * par, v(g_)))
        S('v_xor_b32 %s, %s, %s' % (v(t), v(t), v(f)))
        S('v_lshl_add_u32 %s, %s, 4, %s' % (v(V_KA0 + par), v(t), v(key)))
    r, row, x, c = T + 2, T + 4, T + 5, T + 6
    S('v_bfe_u32 %s, %s, 2, 2' % (v(r), v(L)))
    S('v_lshl_add_u32 %s, %s, 2, %s' % (v(row), v(g_), v(r)))
    S('v_and_b32 %s, 3, %s' % (v(c), v(L)))
    S('v_bfe_u32 %s, %s, 1, 2' % (v(x), v(row)))
    S('v_mul_u32_u24 %s, 384, %s' % (v(row), v(row)))
    S('v_lshl_add_u32 %s, %s, 3, %s' % (v(r), v(c), v(row)))
    for d4 in range(4):
        S('v_xor_b32 %s, %d, %s' % (v(T + 7), d4, v(x)))
        S('v_lshl_add_u32 %s, %s, 5, %s' % (v(V_VA0 + d4), v(T + 7), v(r)))
    S('v_mul_u32_u24 %s, 1536, %s' % (v(T + 7), v(g_)))
    S('v_add_u32 %s, %s, %s' % (v(row), v(row), v(T + 7)))
    S('v_lshl_add_u32 %s, %s, 4, %s' % (v(r), v(c), v(row)))
    S('v_and_b32 %s, 1, %s' % (v(x), v(x)))
    for par in range(2):
        S('v_xor_b32 %s, %d, %s' % (v(T + 7), par, v(x)))
        S('v_lshl_add_u32 %s, %s, 6, %s' % (v(V_WA + par), v(T + 7), v(r)))
        for st in (1, 2): S('v_add_u32 %s, %d, %s' % (v(V_WA + 2 * st + par), st * 2 * SLOT, v(V_WA + par)))
    RT = opts.get('retile', True)
    if RT:
        S('s_load_dwordx2 s[32:33], s[0:1], %d\ns_load_dwordx4 s[68:71], s[0:1], %d\ns_load_dwordx4 s[72:75], s[0:1], %d' % (KARG['wo'], KARG['w1'], KARG['w3']))
        S('s_lshl_b32 s50, %s, 8\ns_add_u32 s50, s50, s2' % s(S_WAVE))
        tab = [(0, 32, 10, 1280, 192, 24, WS_TWO), (320, 74, 5, 1280, 48, 24, WS_TW4), (400, 68, 5, 1280, 20, 20, WS_TW1),
               (440, 70, 5, 1280, 20, 20, WS_TW2), (480, 72, 6, 3072, 20, 20, WS_TW3), (576, 72, 6, 3072, 20, 0, WS_TW3)]
        S('s_waitcnt lgkmcnt(0)')
        sNB, sLD, sNK, sLEN, sDST, sF, sMG = 34, 35, 36, 37, 44, 45, 46
        for k, (f0, ptr, nb, ldw, nks, ln, dst) in enumerate(tab):
            op = 's_mov_b32' if k == 0 else 's_cmov_b32'
            if k: S('s_cmp_ge_u32 s50, %d' % f0)
            for r_, val in ((sNB, nb), (sLD, ldw), (sNK, nks), (sLEN, ln), (sDST, dst), (sF, f0), (sMG, -(-65536 // nb))):
                S('%s %s, %d' % (op, s(r_), val))
            if k: S('s_cselect_b32 s32, %s, s32\ns_cselect_b32 s33, %s, s33' % (s(ptr), s(ptr + 1)))
        S('s_sub_u32 s50, s50, %s' % s(sF))
        S('s_mul_i32 s51, s50, %s\ns_lshr_b32 s51, s51, 16' % s(sMG))
        S('s_mul_i32 s53, s51, %s\ns_sub_u32 s50, s50, s53' % s(sNB))
        S('s_cmp_eq_u32 %s, 10\ns_cselect_b32 s52, 2, 3\ns_cmp_eq_u32 %s, 6\ns_cselect_b32 s52, 4, s52' % (s(sNB), s(sNB)))
        S('s_lshr_b32 s53, s51, s52\ns_lshl_b32 s54, s53, s52\ns_sub_u32 s51, s51, s54')
        S('s_mul_i32 s53, s53, %s' % s(sLEN))
        S('s_mul_i32 s54, s51, %s\ns_add_u32 s54, s54, s53\ns_mul_i32 s54, s54, %s\ns_add_u32 s54, s54, s50\ns_lshl_b32 s54, s54, 10\ns_add_u32 s54, s54, %s' % (s(sNK), s(sNB), s(sDST)))
        S('s_lshl_b32 %s, %s, 5\ns_lshl_b32 %s, %s, 10' % (s(S_RS), s(sLD), s(S_RD), s(sNB)))
        S('s_add_u32 %s, s38, s54\ns_addc_u32 %s, s39, 0\ns_mul_i32 %s, %s, %s\ns_mov_b32 %s, 0x20000' % (s(S_TD), s(S_TD + 1), s(S_TD + 2), s(sLEN), s(S_RD), s(S_TD + 3)))
        S('s_lshl_b32 s55, s50, 10\ns_sub_u32 %s, %s, s55\ns_max_i32 %s, %s, 0' % (s(S_TD + 2), s(S_TD + 2), s(S_TD + 2), s(S_TD + 2)))
        S('s_mul_i32 s51, s51, %s\ns_lshl_b32 s51, s51, 5\ns_mul_i32 s53, s53, %s\ns_add_u32 s53, s53, s51' % (s(sNB), s(S_RS)))
        S('s_add_u32 %s, s32, s53\ns_addc_u32 %s, s33, 0\ns_mul_i32 %s, %s, %s\ns_mov_b32 %s, 0x20000' % (s(S_TS_), s(S_TS_ + 1), s(S_TS_ + 2), s(sLEN), s(S_RS), s(S_TS_ + 3)))
        S('s_sub_u32 %s, %s, s51\ns_max_i32 %s, %s, 0' % (s(S_TS_ + 2), s(S_TS_ + 2), s(S_TS_ + 2), s(S_TS_ + 2)))
        S('s_mov_b32 %s, 0\ns_sub_u32 %s, 0, %s' % (s(S_RSO), s(S_RDO), s(S_RD)))
        t0, t1, t2 = T + 2, T + 3, T + 4
        S('s_lshl_b32 s50, s50, 6\ns_lshl_b32 s52, %s, 1\ns_and_b32 s55, %s, 1\ns_xor_b32 s55, s55, 1\ns_lshl_b32 s55, s55, 1' % (s(sNB), s(sNB)))
        S('v_lshrrev_b32 %s, 4, %s' % (v(t0), v(V_L16)))
        S('v_add_u32 %s, s50, %s' % (v(t0), v(t0)))
        S('v_mul_lo_u32 %s, %s, %s' % (v(t1), v(t0), s(sMG)))
        S('v_lshrrev_b32 %s, 17, %s' % (v(t1), v(t1)))
        S('v_mul_lo_u32 %s, %s, s52' % (v(t2), v(t1)))
        S('v_sub_u32 %s, %s, %s' % (v(t0), v(t0), v(t2)))
        S('v_lshrrev_b32 %s, 1, %s' % (v(t2), v(t1)))
        S('v_and_b32 %s, s55, %s' % (v(t2), v(t2)))
        S('v_xor_b32 %s, %s, %s' % (v(t0), v(t0), v(t2)))
        S('v_mul_lo_u32 %s, %s, %s' % (v(t1), v(t1), s(sLD)))
        S('v_lshl_add_u32 %s, %s, 4, %s' % (v(V_RT), v(t0), v(t1)))
        for nb in (5, 6, 10):
            mg = -(-65536 // nb)
            assert all((i * mg) >> 17 == i // (2 * nb) for i in range(64 * nb)) and all((i * mg) >> 16 == i // nb for i in range(448))
    for qb in range(4): S('v_mov_b32 %s, 0xff800000' % v(V_M + qb))

    A = Gaps(960)
    LA = opts.get('LA', 3); XA = opts.get('XA', 76)
    def WF(pair, ks): return 192 + ((pair % 6) * 2 + ks) * 4
    for st in range(10):
        for db in range(12):
            for qb in range(4):
                for ks in range(2):
                    d = v(QA(db, qb), 4)
                    A.mf[st * 96 + db * 8 + qb * 2 + ks] = '%s %s, %s, %s, %s' % (MF, d, a(WF(st * 12 + db, ks), 4), a(hreg(st, ks, qb), 4), '0' if (st == 0 and ks == 0) else d)
    def wreads(pair):
        st, db = pair // 12, pair % 12
        base = RING[st % 6]; sset = base // (2 * SLOT)
        j, b = db >> 1, db & 1
        return [('ds_read_b64_tr_b16 %s, %s offset:%d' % (a(WF(pair, ks) + 2 * eh, 2), v(V_WA + 2 * sset + (j & 1)),
                 base - sset * 2 * SLOT + (32 * ks + 4 * eh) * 384 + (j >> 1) * 128 + 8 * b), ('WF', pair)) for ks in range(2) for eh in range(2)]
    for st in range(10):
        bg = st * 96 + XA
        vmtags = [('E', st + 1), ('H', st + 1)] if st < 9 else [('K', 0)]
        A.add(bg, [('WAIT', vmtags, [('WF', st * 12 + 11)]), ('s_barrier', None)], 8)
    pre_reads = []
    nxt = -1
    for pair in range(120):
        if pair < LA: pre_reads += wreads(pair); continue
        st = pair // 12
        for k, rd in enumerate(wreads(pair)):
            lo = max(8 * (pair - LA) + 2 * k, nxt + 1, (st - 1) * 96 + XA + 1)
            nxt = A.place(rd, lo, 8 * pair - 3, mem=True)
    for pair in range(2, 120, 2):
        A.place(('WAIT', None, [('WF', pair), ('WF', pair + 1)]), 8 * pair - 1, 8 * pair - 1)
    order = list(range(NB, 15))
    plan = {p: [] for p in range(10)}
    he = NB; ee = NB
    for p in range(10):
        quota = opts.get('quota', 20)
        cnt = 0
        while True:
            can_e = ee < 15 and ee - 6 <= p - 1
            can_h = he < 10 and he - 6 <= p - 2
            if can_h and (he <= ee or not can_e) and cnt + 8 <= quota: plan[p].append(hloads(he)); he += 1; cnt += 8
            elif can_e and cnt + 6 <= quota: plan[p] += elem(ee); ee += 1; cnt += 6
            else: break
    assert he == 10 and ee == 15
    for p in range(10):
        lo = 0 if p == 0 else (p - 1) * 96 + XA + 1
        hi_ = p * 96 + XA - 1
        n = sum(len(t[1]) for t in plan[p]); k = 0; cur = lo
        for t in plan[p]:
            if t[0] is not None: cur = A.place(t[0], cur, hi_) + 1
            for x in t[1]:
                cur = A.place(x, max(cur, lo + (k * (hi_ - lo - 4)) // max(n, 1)), hi_, cost=8, mem=True) + 1; k += 1
            if t[2] is not None: cur = A.place(t[2], cur, hi_ + 8, cost=4 if '\n' not in t[2][0] else 8)
    cv = []
    cur = 0
    for i in range(96):
        ks = i // 16
        it = ('v_cvt_pk_bf16_f32 %s, %s, %s' % (v(i), v(2 * i), v(2 * i + 1)), None)
        lo = 864 + 16 * ks + 8 + 2 * ((i % 16) // 4) + 8
        if max(lo, cur) < 959 and opts.get('cvtov', True):
            try:
                cur = A.place(it, max(lo, cur), 959); continue
            except AssertionError: cur = 960
        cv.append(it)
    S.wait(vm=[('E', 0), ('H', 0)], lg=0)
    S('s_barrier')
    S.stamp(0)
    for x in pre_reads: put(S, x)
    S.wait(lg=[('WF', 0), ('WF', 1)])
    A.emit(S)
    S.stamp(1)
    S('s_nop 7')
    for x in cv: put(S, x)
    if opts.get('pretouch'):
        S('v_lshlrev_b32 %s, 3, %s' % (v(T + 9), v(V_L16)))
        S('v_min_u32 %s, 6016, %s' % (v(T + 16), v(T + 9)))
        S('s_mov_b32 s50, 0')
        for qb in range(4):
            S('buffer_load_dword %s, %s, %s, s50 offen' % (v(T + 10 + qb), v(T + 16), s(S_O, 4)), tag='touch')
            S('s_add_u32 s50, s50, 196608')
        S('s_lshl_b32 s50, s2, 2\ns_add_u32 s50, s50, %s\ns_mul_i32 s50, s50, 10240\ns_add_u32 s50, s50, %d' % (s(S_WAVE), WS_PART))
        S('s_add_u32 %s, s38, s50\ns_addc_u32 %s, s39, 0\ns_mov_b32 %s, 10240\ns_mov_b32 %s, 0x20000\ns_mov_b32 s50, 8192' % (s(S_W), s(S_W + 1), s(S_W + 2), s(S_W + 3)))
        S('buffer_load_dword %s, %s, %s, 0 offen' % (v(T + 14), v(T + 9), s(S_W, 4)), tag='touch')
        S('buffer_load_dword %s, %s, %s, s50 offen' % (v(T + 15), v(T + 9), s(S_W, 4)), tag='touch')
    S('L_attn_restart:')
    S('s_mov_b32 %s, %d\ns_mov_b32 %s, %d' % (s(S_KR), KSLOT[0], s(S_VR), VSLOT[2]))
    for par in range(2): S('v_mov_b32 %s, %s' % (v(V_KA + par), v(V_KA0 + par)))
    def kread(kb, ks, tag):
        return ('ds_read_b128 %s, %s offset:%d' % (a(A_KF + 4 * ks, 4), v(V_KA + (ks & 1)), kb * 16 * 384 + (ks >> 1) * 128), tag)
    def vread(db, kh, eh, tag):
        return ('ds_read_b64_tr_b16 %s, %s offset:%d' % (a(A_VF + ((db % 3) * 2 + kh) * 4 + 2 * eh, 2), v(V_VA + (db & 3)), (32 * kh + 16 * eh) * 384 + (db >> 2) * 128), tag)
    for ks in range(6): put(S, kread(0, ks, ('KF', -4)))
    for qb in range(4): S('v_mov_b32 %s, 0' % v(V_L + qb))
    S.wait(lg=0)
    for qb in range(4):
        for ks in range(6):
            S('%s %s, %s, %s, %s' % (MF, v(SR(qb), 4), a(A_KF + 4 * ks, 4), v(Q(qb, ks), 4), '0' if ks == 0 else v(SR(qb), 4)))
    S('s_nop 3')
    def xlane(op, regs, tmp):
        for k, r_ in enumerate(regs): S('v_mov_b32 %s, %s' % (v(tmp + k), v(r_)))
        for k, r_ in enumerate(regs): S('v_permlane32_swap_b32 %s, %s' % (v(r_), v(tmp + k)))
        for k, r_ in enumerate(regs): S('%s %s, %s, %s' % (op, v(r_), v(r_), v(tmp + k)))
        for k, r_ in enumerate(regs): S('v_mov_b32 %s, %s' % (v(tmp + k), v(r_)))
        for k, r_ in enumerate(regs): S('v_permlane16_swap_b32 %s, %s' % (v(r_), v(tmp + k)))
        for k, r_ in enumerate(regs): S('%s %s, %s, %s' % (op, v(r_), v(r_), v(tmp + k)))
    for qb in range(4): S('v_max3_f32 %s, %s, %s, %s' % (v(T + qb), v(SR(qb)), v(SR(qb) + 1), v(V_M + qb)))
    for qb in range(4): S('v_max3_f32 %s, %s, %s, %s' % (v(T + qb), v(SR(qb) + 2), v(SR(qb) + 3), v(T + qb)))
    xlane('v_max_f32', [T + qb for qb in range(4)], T + 4)
    for qb in range(4):
        for i in range(4): S('v_sub_f32 %s, 0, %s' % (v(V_NEGM + 4 * qb + i), v(T + qb)))
    S('s_mov_b32 %s, 15' % s(S_CNT))

    M = Gaps(33 * 192, base=-192)
    WO = opts.get('WO', 10)
    def gi(Tp, w, g): return Tp * 192 + w * 48 + g
    for Tp in range(-1, 31):
        M.mark[Tp * 192] = 'p%d' % Tp
        for w in range(4):
            if Tp <= 30:
                for qb in range(4):
                    for ks in range(6):
                        M.mf[gi(Tp, w, qb * 6 + ks) - M.base] = '%s %s, %s, %s, %s' % (MF, v(SR(qb), 4), a(A_KF + 4 * ks, 4), v(Q(qb, ks), 4), v(V_NEGM + 4 * qb, 4) if ks == 0 else v(SR(qb), 4))
            if 0 <= Tp <= 30:
                for dd in range(3):
                    db = 3 * w + dd
                    for qb in range(4):
                        for kh in range(2):
                            d = a(OA(db, qb), 4)
                            M.mf[gi(Tp, w, 24 + dd * 8 + qb * 2 + kh) - M.base] = '%s %s, %s, %s, %s' % (MF, d, a(A_VF + (dd * 2 + kh) * 4, 4), v(P(Tp & 1, kh, qb), 4), '0' if (Tp == 0 and kh == 0) else d)
    N = lambda t_: (t_, None)
    if not opts.get('nosm'):
        for Tp in range(-1, 31):
            for w in range(4):
                for qb in range(4):
                    g0 = gi(Tp, w, WO + 12 * qb); b = SR(qb); pr = P((Tp + 1) & 1, w >> 1, qb) + 2 * (w & 1)
                    for r_ in range(4):
                        M.add(g0 + 3 * r_, N('v_exp_f32 %s, %s' % (v(b + r_), v(b + r_))), 8)
                        M.add(g0 + 3 * r_ + 1, N('v_add_f32 %s, %s, %s' % (v(V_L + qb), v(V_L + qb), v(b + r_))), 4)
                    M.add(g0 + 5, N('v_cvt_pk_bf16_f32 %s, %s, %s' % (v(pr), v(b), v(b + 1))), 4)
                    M.add(g0 + 11, N('v_cvt_pk_bf16_f32 %s, %s, %s' % (v(pr + 1), v(b + 2), v(b + 3))), 4)
    VG = [2, 3, 5, 8, 9, 11, 14, 15, 17, 20, 21, 23]
    KG = [32, 33, 35, 38, 39, 41]
    for Tp in range(-1, 31):
        for w in range(4):
            W = Tp * 4 + w
            if Tp >= 0:
                k = 0
                for dd in range(3):
                    for kh in range(2):
                        for eh in range(2):
                            M.add(gi(Tp, w, VG[k]), vread(3 * w + dd, kh, eh, ('VF', W, dd)), 4, mem=True); k += 1
                M.add(gi(Tp, w, 18), ('WAIT', None, [('VF', W, 0)]), 4)
            last = Tp == 31
            if w == 3 and Tp <= 30:
                vmt = 0 if opts.get('nodma') else [('V', Tp + 1), ('K', Tp + 2)]
                M.add(gi(Tp, w, 30), [('WAIT', vmt, 0), N('s_barrier')], 8)
            elif Tp >= 0:
                M.add(gi(Tp, w, 30), ('WAIT', None, 0), 4)
            if not last:
                for ks in range(6): M.add(gi(Tp, w, KG[ks]), kread((w + 1) & 3, ks, ('KF', W + 1)), 4, mem=True)
                M.add(gi(Tp, w, 47), ('WAIT', None, [('KF', W + 1)]), 4)
    if RT:
        for Tp in range(0, 31):
            M.add(gi(Tp, 0, 42), ('buffer_load_dwordx4 %s, %s, %s, %s offen' % (a(A_RT + 4 * (Tp & 1), 4), v(V_RT), s(S_TS_, 4), s(S_RSO)), 'rt'), 8, mem=True)
            M.place(N('s_add_u32 %s, %s, %s' % (s(S_RSO), s(S_RSO), s(S_RS))), gi(Tp, 1, 24), gi(Tp, 1, 47), half=30)
            if Tp >= 1:
                M.add(gi(Tp, 3, 42), ('buffer_store_dwordx4 %s, %s, %s, %s offen' % (a(A_RT + 4 * ((Tp - 1) & 1), 4), v(V_L16), s(S_TD, 4), s(S_RDO)), 'rt'), 8, mem=True)
                M.place(N('s_add_u32 %s, %s, %s' % (s(S_RDO), s(S_RDO), s(S_RD))), gi(Tp, 2, 24), gi(Tp, 2, 41), half=30)
    for Tp in range(-1, 31):
        if True:
            lo, hi_ = gi(Tp, 2, 42), gi(Tp, 3, 29)
            c = M.place(N('s_add_u32 %s, %s, %s' % (s(S_KD), s(S_KR), s(S_WB))), lo, hi_, half=30)
            c = M.place(N('s_add_u32 %s, %s, %d' % (s(S_KR), s(S_KR), SLOT)), c, hi_, half=30)
            c = M.place([N('s_cmp_eq_u32 %s, %d' % (s(S_KR), 3 * SLOT)), N('s_cmov_b32 %s, 0' % s(S_KR))], c, hi_, cost=8)
            for par in range(2): c = M.place(N('v_add_u32 %s, %s, %s' % (v(V_KA + par), s(S_KR), v(V_KA0 + par))), c, hi_, half=30)
        lo, hi_ = gi(Tp, 3, 24), gi(Tp + 1, 0, 1)
        c = M.place(N('s_add_u32 %s, %s, %s' % (s(S_VD), s(S_VR), s(S_WB))), lo, hi_, half=30)
        c = M.place(N('s_add_u32 %s, %s, %d' % (s(S_VR), s(S_VR), SLOT)), c, hi_, half=30)
        c = M.place([N('s_cmp_eq_u32 %s, %d' % (s(S_VR), 6 * SLOT)), N('s_cmov_b32 %s, %d' % (s(S_VR), 3 * SLOT))], c, hi_, cost=8)
        for d4 in range(4): c = M.place(N('v_add_u32 %s, %s, %s' % (v(V_VA + d4), s(S_VR), v(V_VA0 + d4))), c, hi_, half=30)
    if not opts.get('nodma'):
        for Tp in range(-1, 30):
            lo, hi_ = gi(Tp + 1, 0, 0), gi(Tp + 1, 3, 23)
            cur = lo; k = 0
            for kind, dst, tj in (('K', S_KD, Tp + 4), ('V', S_VD, Tp + 3)):
                for h in range(2):
                    t = dma_tile(kind, (s(dst), h * TILE), (kind, tj))
                    cur = M.place(t[0], cur, hi_, half=12) + 1
                    for x in t[1]:
                        cur = M.place(x, max(cur, lo + (k * (hi_ - lo - 24)) // 12), hi_, cost=8, mem=True) + 1; k += 1
                    cur = M.place(t[2], cur, hi_, half=12)
    S.stamp(2)
    M.emit(S, hi=31 * 192)
    S.mark('p31')
    S.stamp(3)
    tail0 = []
    for g in range(31 * 192, 31 * 192 + 24):
        assert M.first[g - M.base] is None
        tail0 += M.rest[g - M.base]
    def FS(p, kh): return 192 + ((p % 6) * 2 + kh) * 4
    def vread2(db):
        return [('ds_read_b64_tr_b16 %s, %s offset:%d' % (a(FS(db, kh) + 2 * eh, 2), v(V_VA + (db & 3)), (32 * kh + 16 * eh) * 384 + (db >> 2) * 128), ('VL', db))
                for kh in range(2) for eh in range(2)]
    adr = [x for x in tail0 if x[0].startswith('v_add_u32')]
    rest = [x for x in tail0 if not x[0].startswith('v_add_u32')]
    for x in adr: put(S, x)
    rq = vread2(0) + vread2(1) + vread2(2)
    while rest or rq:
        if rq: put(S, rq.pop(0))
        if rest: put(S, rest.pop(0))
    X = Stream()
    class _S:
        pass
    regs = [V_L + qb for qb in range(4)]
    for op_, sw in (('v_add_f32', 32), ('v_add_f32', 16)):
        for k, r_ in enumerate(regs): X('v_mov_b32 %s, %s' % (v(T + k), v(r_)))
        for k, r_ in enumerate(regs): X('v_permlane%d_swap_b32 %s, %s' % (sw, v(r_), v(T + k)))
        for k, r_ in enumerate(regs): X('%s %s, %s, %s' % (op_, v(r_), v(r_), v(T + k)))
    X('s_mov_b32 s51, %d' % thr)
    for qb in range(4): X('v_cmp_ngt_f32 %s, s51, %s' % (s(32 + 2 * qb, 2), v(V_L + qb)))
    for qb in range(4): X('v_rcp_f32 %s, %s' % (v(V_L + qb), v(V_L + qb)))
    X('s_lshl_b32 s50, %s, 2\ns_add_u32 s50, s50, %d\nv_mov_b32 %s, s50' % (s(S_WAVE), FLAG_OFF, v(T + 5)))
    chk = [(i.text, None) for i in X.ins]
    chk.append(('s_or_b64 s[32:33], s[32:33], s[34:35]\ns_or_b64 s[36:37], s[36:37], s[38:39]\ns_or_b64 s[32:33], s[32:33], s[36:37]\ns_cselect_b32 s50, 1, 0', None))
    chk += [N('v_mov_b32 %s, s50' % v(T + 4)), N('v_mov_b32 %s, %d' % (v(T + 6), FLAG_OFF)), ('ds_write_b32 %s, %s' % (v(T + 5), v(T + 4)), 'flagw'),
            N('s_mov_b32 s32, 0\ns_mov_b32 s33, %d' % 196608), N('s_mov_b32 s34, %d\ns_mov_b32 s35, %d' % (2 * 196608, 3 * 196608)),
            ('WAIT', None, 'flagw'), N('s_barrier'), ('ds_read_b128 %s, %s' % (v(T + 8, 4), v(T + 6)), 'flagr'), None, None, None, None, None, None,
            ('WAIT', None, 'flagr'), N('v_or_b32 %s, %s, %s' % (v(T + 8), v(T + 8), v(T + 9))), N('v_or3_b32 %s, %s, %s, %s' % (v(T + 8), v(T + 8), v(T + 10), v(T + 11))),
            None, N('v_readfirstlane_b32 s51, %s' % v(T + 8)), None, N('s_cmp_gt_u32 s51, %s\ns_cbranch_scc1 L_attn_fallback' % s(S_PASS))]
    units = []
    k = 0
    sf = opts.get('osf', '')
    for j in range(6):
        for qb in range(4):
            tb = 128 + (k % 4) * 8; pb = 96 + (k % 8) * 4; k += 1
            u = [N('v_accvgpr_read_b32 %s, %s' % (v(tb + 4 * b + i), a(OA(2 * j + b, qb) + i))) for b in range(2) for i in range(4)]
            u += [N('v_mul_f32 %s, %s, %s' % (v(tb + i), v(tb + i), v(V_L + qb))) for i in range(8)]
            u += [N('v_cvt_pk_bf16_f32 %s, %s, %s' % (v(pb + i), v(tb + 2 * i), v(tb + 2 * i + 1))) for i in range(4)]
            u.append(N('buffer_store_dwordx4 %s, %s, %s, %s offen offset:%d %s' % (v(pb, 4), v(V_L16B if j >= 4 else V_L16), s(S_O, 4), s(32 + qb), (j % 4) * 1024, sf)))
            units.append((16 * j + 8 + 2 * qb + 1 + 3, u))
    PER = opts.get('epi_per', 3)
    uq = []
    for db in range(12):
        S.wait(lg=('VL', db))
        if db + 3 < 12: rq = vread2(db + 3)
        for qb in range(4):
            for kh in range(2):
                m_ = db * 8 + qb * 2 + kh
                d = a(OA(db, qb), 4)
                S('%s %s, %s, %s, %s' % (MF, d, a(FS(db, kh), 4), v(P(1, kh, qb), 4), d))
                if rq and kh == 0: put(S, rq.pop(0))
                while units and units[0][0] <= m_: uq += units.pop(0)[1]
                for _ in range(2 if chk else PER):
                    if chk: put(S, chk.pop(0))
                    elif uq: put(S, uq.pop(0))
    assert not chk
    for _, u in units: uq += u
    for x in uq: put(S, x)
    S.stamp(4)
    S('s_endpgm')
    S.resolve()
    S.autonop()
    errs = S.check('attn')
    Fb = Stream()
    Fb('L_attn_fallback:')
    Fb('s_waitcnt vmcnt(0) lgkmcnt(0)\ns_barrier')
    Fb('s_mov_b32 %s, 1\ns_mov_b32 %s, 0\ns_mov_b32 %s, 64' % (s(S_PASS), s(S_KOFF), s(S_CNT)))
    for par in range(2): Fb('v_mov_b32 %s, %s' % (v(V_KA + par), v(V_KA0 + par)))
    Fb('L_attn_fb_loop:')
    put_tile(Fb, dma_tile('K', (s(S_WB), KSLOT[0]), 'k'))
    Fb('s_waitcnt vmcnt(0)\ns_barrier')
    for kb in range(2):
        for ks in range(6): put(Fb, kread(kb, ks, 'kf'))
        Fb('s_waitcnt lgkmcnt(0)')
        for qb in range(4):
            for ks in range(6):
                Fb('%s %s, %s, %s, %s' % (MF, v(SR(qb), 4), a(A_KF + 4 * ks, 4), v(Q(qb, ks), 4), '0' if ks == 0 else v(SR(qb), 4)))
        Fb('s_nop 7')
        for qb in range(4):
            for i in range(2): Fb('v_max3_f32 %s, %s, %s, %s' % (v(V_M + qb), v(SR(qb) + 2 * i), v(SR(qb) + 2 * i + 1), v(V_M + qb)))
    Fb('s_barrier')
    Fb('s_sub_u32 %s, %s, 1\ns_cmp_lg_u32 %s, 0\ns_cbranch_scc1 L_attn_fb_loop' % (s(S_CNT), s(S_CNT), s(S_CNT)))
    Fb('s_mov_b32 %s, 0\ns_mov_b32 %s, 0' % (s(S_KOFF), s(S_VOFF)))
    for e in range(10, 15):
        for t in elem(e): put_tile(Fb, t)
    Fb('s_waitcnt vmcnt(0)\ns_barrier\ns_branch L_attn_restart')
    Fb.resolve(); errs += Fb.check('fallback')
    pos = fold(S, [('p%d' % (1 + 2 * k), 'p%d' % (3 + 2 * k)) for k in range(15)])
    out = Stream()
    out.ins = S.ins[:pos['p1']]
    out('L_attn_loop:')
    out.ins += S.ins[pos['p1']:pos['p3']]
    out('s_sub_u32 %s, %s, 1\ns_cmp_lg_u32 %s, 0\ns_cbranch_scc1 L_attn_loop' % (s(S_CNT), s(S_CNT), s(S_CNT)))
    out.ins += S.ins[pos['p31']:]
    out.ins += Fb.ins
    out('L_attn_end:\ns_endpgm')
    return name, out.text(), kernel_desc(name, 512, 256), LDS_BYTES, errs

def write(fn, **kw):
    name, text, desc, lds, errs = gen(**kw)
    for e in errs[:30]: print(e)
    print(fn, len(errs), 'errors')
    full = '; @launch kernel=%s grid=(256,1,1) block=(256,1,1) lds=%d\n.amdgcn_target "amdgcn-amd-amdhsa--gfx950"\n.text\n' % (name, lds)
    full += kernel_head(name) + text + '.section .rodata,"a"\n.p2align 6\n' + desc
    open('dev/' + fn, 'w').write(full)

if __name__ == '__main__':
    import sys
    for i, o in enumerate(eval(sys.argv[1]) if len(sys.argv) > 1 else [{}]):
        write('t_a16_%d.s' % i, opts=o)
```

```python
from asmlib import *
from layout import *
from gen_small import srd, unpack, xsum, finish, f32, LOG2E, meanrstd
from gen_attn16 import Gaps, put
import math
MF = 'v_mfma_f32_16x16x32_bf16'

def magic(d, n):
    for sh in range(8, 24):
        m = -(-(1 << sh) // d)
        if all((i * m) >> sh == i // d for i in range(n)) and n * m < (1 << 32) and m < (1 << 24): return m, sh
    raise AssertionError

def dma_offsets(S, dst, n, cpr, ldw, swz, lane, t, row0=None, wrap4=True):
    m, sh = magic(cpr, 64 * n)
    for i in range(n):
        S('v_add_u32 %s, %d, %s' % (v(t), 64 * i, v(lane)))
        S('v_mul_u32_u24 %s, %d, %s' % (v(t + 1), m, v(t)))
        S('v_lshrrev_b32 %s, %d, %s' % (v(t + 1), sh, v(t + 1)))
        S('v_mul_u32_u24 %s, %d, %s' % (v(t + 2), cpr, v(t + 1)))
        S('v_sub_u32 %s, %s, %s' % (v(t), v(t), v(t + 2)))
        if swz:
            S('v_bfe_u32 %s, %s, 2, 1' % (v(t + 2), v(t + 1)))
            S('v_lshlrev_b32 %s, 1, %s' % (v(t + 2), v(t + 2)))
            S('v_xor_b32 %s, %s, %s' % (v(t), v(t), v(t + 2)))
        S('v_mul_u32_u24 %s, %d, %s' % (v(t + 1), ldw, v(t + 1)))
        S('v_lshl_add_u32 %s, %s, 4, %s' % (v(t), v(t), v(t + 1)))
        S('v_subrev_u32 %s, %d, %s' % (v(dst + i), 1024 * (i & 3), v(t)))

def read_addr(S, dst, rowb, swz, lane, t, sbase):
    S('v_lshrrev_b32 %s, 2, %s' % (v(t), v(lane)))
    S('v_mul_u32_u24 %s, %d, %s' % (v(t), rowb, v(t)))
    S('v_and_b32 %s, 3, %s' % (v(t + 1), v(lane)))
    S('v_lshl_add_u32 %s, %s, 3, %s' % (v(t), v(t + 1), v(t)))
    if sbase: S('v_add_u32 %s, %s, %s' % (v(t), sbase, v(t)))
    if not swz: S('v_mov_b32 %s, %s' % (v(dst), v(t))); return
    S('v_bfe_u32 %s, %s, 4, 1' % (v(t + 1), v(lane)))
    S('v_lshl_add_u32 %s, %s, 5, %s' % (v(dst), v(t + 1), v(t)))
    S('v_xor_b32 %s, 1, %s' % (v(t + 1), v(t + 1)))
    S('v_lshl_add_u32 %s, %s, 5, %s' % (v(dst + 1), v(t + 1), v(t)))

def gelu(S, regs, tmp, vc1):
    c0 = -2 * LOG2E * math.sqrt(2 / math.pi)
    for k in range(0, len(regs), len(tmp)):
        grp = list(zip(regs[k:k + len(tmp)], tmp))
        for y, t in grp: S('v_mul_f32 %s, %s, %s' % (v(t), v(y), v(y)))
        for y, t in grp: S('v_fmaak_f32 %s, %s, %s, %s' % (v(t), v(vc1), v(t), f32(c0)))
        for y, t in grp: S('v_mul_f32 %s, %s, %s' % (v(t), v(t), v(y)))
        for y, t in grp: S('v_exp_f32 %s, %s' % (v(t), v(t)))
        for y, t in grp: S('v_add_f32 %s, 1.0, %s' % (v(t), v(t)))
        for y, t in grp: S('v_rcp_f32 %s, %s' % (v(t), v(t)))
        for y, t in grp: S('v_mul_f32 %s, %s, %s' % (v(y), v(y), v(t)))
GELU_C1 = -2 * LOG2E * math.sqrt(2 / math.pi) * 0.044715

def gen_ksplit(kind):
    cfg = {'g1': dict(TB=4, NB=5, KS=5, w='w1', ldw=1280, b=WS_HN, KT=20, RW=5),
           'g2': dict(TB=4, NB=5, KS=5, w='w2', ldw=1280, b=WS_G, KT=20, RW=5),
           'g3': dict(TB=8, NB=6, KS=5, w='w3', ldw=3072, b=WS_X1, KT=20, RW=5),
           'g4': dict(TB=4, NB=5, KS=12, w='w4', ldw=1280, b=WS_U, KT=48, RW=6)}[kind]
    TB, NB, KS, ldw, KT, RW = (cfg[k] for k in ('TB', 'NB', 'KS', 'ldw', 'KT', 'RW'))
    TW = TB // 4; swz = NB % 2 == 0; rowb = NB * 32
    REGION = max(RW * NB, 3 * NB * TW) * 1024
    name = kind + '_kernel'; S = Stream()
    NACC = TB * NB * 4
    E = NACC
    VB = 224 if TB == 8 else 128
    V_WO, V_BO, V_RA, V_RED, V_L16, V_TOK, V_C1, T = VB, VB + 6, VB + 14, VB + 16, VB + 20, VB + 21, VB + 22, VB + 23
    L = T + 8
    def ACC(tb, nb): return (tb * NB + nb) * 4
    def BF(ks, tb): return (ks * TB + tb) * 4
    def AF(ks, nb): return 192 + ((ks & 1) * NB + nb) * 4
    S_W, S_B, S_WS = 8, 12, 6
    S('s_cmp_ge_u32 s2, 256\ns_cbranch_scc1 L_%s_end' % kind)
    S('s_load_dwordx2 s[4:5], s[0:1], %d\ns_load_dwordx2 s[6:7], s[0:1], %d' % (KARG[cfg['w']], KARG['ws']))
    if kind == 'g4': S('s_load_dwordx2 s[40:41], s[0:1], %d' % KARG['out'])
    S('v_lshrrev_b32 %s, 6, v0\nv_and_b32 %s, 63, v0' % (v(T), v(L)))
    S('v_readfirstlane_b32 s24, %s' % v(T))
    lg = 2 if TB == 4 else 1
    S('s_and_b32 s3, s2, 7\ns_lshl_b32 s3, s3, %d\ns_lshr_b32 s25, s2, 3\ns_and_b32 s26, s25, %d\ns_add_u32 s3, s3, s26\ns_lshr_b32 s25, s25, %d' % (lg, (1 << lg) - 1, lg))
    S('s_mul_i32 s3, s3, %d' % TB)
    dma_offsets(S, V_WO, NB, 2 * NB, ldw, swz, L, T)
    S('s_mul_i32 s27, s24, %d' % REGION)
    S('s_mul_i32 s28, s24, %d\ns_mul_i32 s29, s25, %d\ns_add_u32 s28, s28, s29' % (KS * 32 * ldw, rowb))
    S('v_lshlrev_b32 %s, 4, %s' % (v(V_L16), v(L)))
    if kind == 'g2':
        S('s_lshr_b32 s30, s24, 1\ns_add_u32 s30, s30, 1\ns_sub_u32 s31, 0, s30\ns_and_b32 s32, s24, 1\ns_cmp_eq_u32 s32, 1\ns_cselect_b32 s30, s30, s31')
        S('v_and_b32 %s, 15, %s\nv_and_b32 %s, 0x300, %s' % (v(T + 3), v(L), v(T + 4), v(V_L16)))
        S('v_add_u32 %s, s30, %s' % (v(T + 3), v(T + 3)))
    for i in range(TB):
        S('s_mul_i32 s31, s24, %d\ns_add_u32 s31, s31, %d\ns_and_b32 s31, s31, %d\ns_add_u32 s31, s31, s3' % (TW, i, TB - 1))
        if i == 0: S('s_mov_b32 s33, s31')
        if kind == 'g2':
            S('s_lshl_b32 s31, s31, 4')
            S('v_add_u32 %s, s31, %s' % (v(T), v(T + 3)))
            S('v_ashrrev_i32 %s, 4, %s\nv_and_b32 %s, 15, %s' % (v(T + 1), v(T), v(T + 2), v(T)))
            S('v_mul_u32_u24 %s, %d, %s' % (v(T + 1), KT * 1024, v(T + 1)))
            S('v_lshl_add_u32 %s, %s, 4, %s' % (v(T + 2), v(T + 2), v(T + 4)))
            S('v_add_u32 %s, %s, %s' % (v(T + 1), v(T + 1), v(T + 2)))
            S('v_cmp_gt_i32 vcc, 0, %s' % v(T))
            S('v_mov_b32 %s, 0x80000000' % v(T + 2))
            S('v_cndmask_b32 %s, %s, %s, vcc' % (v(V_BO + i), v(T + 1), v(T + 2)))
        else:
            S('s_mul_i32 s31, s31, %d' % (KT * 1024))
            S('v_add_u32 %s, s31, %s' % (v(V_BO + i), v(V_L16)))
    S('s_waitcnt lgkmcnt(0)')
    S('s_add_u32 %s, s4, s28\ns_addc_u32 %s, s5, 0\ns_sub_u32 %s, %d, s28\ns_mov_b32 %s, 0x20000' % (s(S_W), s(S_W + 1), s(S_W + 2), KS * 128 * ldw, s(S_W + 3)))
    srd(S, S_B, S_WS, cfg['b'], 128 * KT * 1024)
    S('s_mov_b32 s34, 0\ns_mul_i32 s35, s24, %d' % (KS * 1024))
    def issue(ks):
        base = (ks % RW) * NB * 1024
        for i in range(NB):
            if i % 4 == 0: S('s_add_u32 m0, s27, %d\ns_nop 0' % (base + 1024 * i))
            S('buffer_load_dwordx4 %s, %s, s34 offen offset:%d lds' % (v(V_WO + i), s(S_W, 4), 1024 * (i & 3)), tag=('L', ks))
        S('s_add_u32 s34, s34, %d' % (32 * ldw))
        for tb in range(TB):
            S('buffer_load_dwordx4 %s, %s, %s, s35 offen offset:%d' % (a(BF(ks, tb), 4), v(V_BO + tb), s(S_B, 4), 1024 * (ks & 3)), tag=('L', ks))
        if ks & 3 == 3: S('s_add_u32 s35, s35, 4096')
    UP = min(RW, 60 // (NB + TB))
    S.stamp(0)
    for ks in range(UP): issue(ks)
    S.stamp(1)
    read_addr(S, V_RA, rowb, swz, L, T, 's27')
    for j in range(1, 4):
        S('s_sub_u32 s31, s24, %d\ns_and_b32 s31, s31, 3\ns_mul_i32 s31, s31, %d\ns_add_u32 s31, s31, %d' % (j, REGION, (j - 1) * NB * TW * 1024))
        S('v_add_u32 %s, s31, %s' % (v(V_RED + j), v(V_L16)))
    S('v_add_u32 %s, s27, %s' % (v(V_RED), v(V_L16)))
    S('v_mov_b32 %s, %s' % (v(V_C1), f32(GELU_C1)))
    if NB == 5:
        for b in range(5):
            S('s_mul_i32 s31, s25, 5\ns_add_u32 s31, s31, %d\ns_and_b32 s32, s31, 1\ns_lshr_b32 s31, s31, 1\ns_lshl_b32 s31, s31, 10\ns_lshl_b32 s32, s32, 3\ns_add_u32 %s, s31, s32' % (b, s(44 + b)))
        S('s_mul_i32 s31, s33, 20480')
        S('v_add_u32 %s, s31, %s' % (v(V_TOK), v(V_L16)))
    def epi_loads():
        if kind == 'g2':
            srd(S, 16, S_WS, WS_H2, ACT); srd(S, 20, S_WS, WS_X1, ACT); srd(S, 36, S_WS, WS_ST, 2048 * 64)
            for b in range(5): S('buffer_load_dwordx2 %s, %s, s[16:19], %s offen' % (v(E + 2 * b, 2), v(V_TOK), s(44 + b)), tag='e')
        if kind == 'g1': srd(S, 20, S_WS, WS_G, ACT)
        if kind == 'g4':
            srd(S, 16, S_WS, WS_X1, ACT); srd(S, 20, S_WS, WS_X, ACT); srd(S, 36, S_WS, WS_MOD + 5 * 2560, 2560)
            for b in range(5): S('buffer_load_dwordx2 %s, %s, s[16:19], %s offen' % (v(E + 2 * b, 2), v(V_TOK), s(44 + b)), tag='e')
            for b in range(5): S('buffer_load_dwordx2 %s, %s, s[20:23], %s offen' % (v(E + 10 + 2 * b, 2), v(V_TOK), s(44 + b)), tag='e')
            S('v_lshrrev_b32 %s, 4, %s\nv_lshlrev_b32 %s, 4, %s\ns_mul_i32 s31, s25, 320' % (v(T), v(L), v(T), v(T)))
            for b in range(5): S('buffer_load_dwordx4 %s, %s, s[36:39], s31 offen offset:%d' % (v(E + 20 + 4 * b, 4), v(T), 64 * b), tag='e')
        if kind == 'g3':
            srd(S, 16, S_WS, WS_ST, 2048 * 64); srd(S, 36, S_WS, WS_CS3, 1536 * 4); srd(S, 20, S_WS, WS_U, 2048 * 1536 * 2)
            S('v_and_b32 %s, 15, %s\nv_lshrrev_b32 %s, 4, %s\nv_lshlrev_b32 %s, 4, %s\nv_lshl_add_u32 %s, %s, 6, %s' % (v(T), v(L), v(T + 1), v(L), v(T + 1), v(T + 1), v(T), v(T), v(T + 1)))
            S('s_lshl_b32 s31, s33, 10\ns_mul_i32 s32, s25, 384')
            for i in range(2): S('buffer_load_dwordx4 %s, %s, s[16:19], s31 offen offset:%d' % (v(E + 4 * i, 4), v(T), 1024 * i), tag='e')
            for b in range(6): S('buffer_load_dwordx4 %s, %s, s[36:39], s32 offen offset:%d' % (v(E + 8 + 4 * b, 4), v(T + 1), 64 * b), tag='e')
    nxt = UP; epi_done = False
    EPI = {'g1': -1, 'g2': -1, 'g3': 1, 'g4': 8}[kind]
    if nxt == KS and EPI < 0: epi_loads(); epi_done = True
    for ks in range(KS):
        S.wait(vm=('L', ks))
        if ks == 0: S.stamp(2)
        if ks == 2: S.stamp(3)
        if ks == KS - 1: S.stamp(4)
        rds = []
        for nb in range(NB):
            for eh in range(2):
                reg = V_RA + (nb & 1 if swz else 0)
                off = (ks % RW) * NB * 1024 + 16 * eh * rowb + ((nb & ~1) if swz else nb) * 32
                rds.append(('ds_read_b64_tr_b16 %s, %s offset:%d' % (a(AF(ks, nb) + 2 * eh, 2), v(reg), off), ('A', ks, nb)))
        for x in rds[:4]: put(S, x)
        rds = rds[4:]
        if nxt < min(KS, RW): issue(nxt); nxt += 1
        for nb in range(NB):
            S.wait(lg=('A', ks, nb))
            for tb in range(TB):
                d = v(ACC(tb, nb), 4)
                S('%s %s, %s, %s, %s' % (MF, d, a(AF(ks, nb), 4), a(BF(ks, tb), 4), '0' if ks == 0 else d))
                if rds and tb < 2: put(S, rds.pop(0))
        if nxt < KS and nxt == ks + RW: issue(nxt); nxt += 1
        if nxt == KS and ks >= EPI and not epi_done: epi_loads(); epi_done = True
    S.stamp(5)
    for j in range(1, 4):
        for i in range(TW):
            for nb in range(NB):
                S('ds_write_b128 %s, %s offset:%d' % (v(V_RED), v(ACC(j * TW + i, nb), 4), ((j - 1) * TW + i) * NB * 1024 + nb * 1024))
    S('s_waitcnt lgkmcnt(0)\ns_barrier')
    for j in range(1, 4):
        for i in range(TW):
            for nb in range(NB):
                S('ds_read_b128 %s, %s offset:%d' % (v(ACC(j * TW + i, nb), 4), v(V_RED + j), (i * NB + nb) * 1024), tag=('R', j, i, nb))
    N1 = TW * NB * 4
    for j in range(1, 4):
        for i in range(TW):
            for nb in range(NB):
                if nb % 3 == 0 or nb == NB - 1: S.wait(lg=('R', j, i, min(nb + 2, NB - 1)))
                for r in range(4): S('v_add_f32 %s, %s, %s' % (v(ACC(i, nb) + r), v(ACC(i, nb) + r), v(ACC(j * TW + i, nb) + r)))
    S.stamp(6)
    X = N1
    if kind == 'g1':
        gelu(S, list(range(20)), list(range(X, X + 10)), V_C1)
        for i in range(10): S('v_cvt_pk_bf16_f32 %s, %s, %s' % (v(X + i), v(2 * i), v(2 * i + 1)))
        for b in range(5): S('buffer_store_dwordx2 %s, %s, s[20:23], %s offen' % (v(X + 2 * b, 2), v(V_TOK), s(44 + b)))
    if kind == 'g2':
        S.wait(vm='e')
        unpack(S, X, E, 10)
        for i in range(20): S('v_add_f32 %s, %s, %s' % (v(i), v(i), v(X + i)))
        for i in range(10): S('v_cvt_pk_bf16_f32 %s, %s, %s' % (v(X + 20 + i), v(2 * i), v(2 * i + 1)))
        for b in range(5): S('buffer_store_dwordx2 %s, %s, s[20:23], %s offen' % (v(X + 20 + 2 * b, 2), v(V_TOK), s(44 + b)))
        unpack(S, 0, X + 20, 10)
        S('v_add_f32 %s, v0, v1\nv_mul_f32 %s, v0, v0\nv_add_f32 %s, v2, v3\nv_mul_f32 %s, v1, v1' % (v(X), v(X + 1), v(X + 2), v(X + 3)))
        for i in range(2, 20):
            o = X + 2 * (i & 1)
            if i >= 4: S('v_add_f32 %s, %s, %s' % (v(o), v(o), v(i)))
            S('v_fmac_f32 %s, %s, %s' % (v(o + 1), v(i), v(i)))
        S('v_add_f32 %s, %s, %s\nv_add_f32 %s, %s, %s' % (v(X), v(X), v(X + 2), v(X + 1), v(X + 1), v(X + 3)))
        xsum(S, [X, X + 1], X + 2, (32, 16))
        S('v_and_b32 %s, 15, %s\nv_lshlrev_b32 %s, 6, %s\ns_lshl_b32 s31, s33, 10\ns_lshl_b32 s32, s25, 3\ns_add_u32 s31, s31, s32' % (v(T), v(L), v(T), v(T)))
        S('buffer_store_dwordx2 %s, %s, s[36:39], s31 offen' % (v(X, 2), v(T)))
    if kind == 'g3':
        S.wait(vm='e')
        for i in range(2):
            S('v_add_f32 %s, %s, %s\nv_add_f32 %s, %s, %s' % (v(E + 4 * i), v(E + 4 * i), v(E + 4 * i + 2), v(E + 4 * i + 1), v(E + 4 * i + 1), v(E + 4 * i + 3)))
        xsum(S, [E, E + 1, E + 4, E + 5], X, (32, 16))
        for i in range(2): meanrstd(S, E + 4 * i, X)
        S('s_mul_i32 s31, s33, 49152\ns_mul_i32 s32, s25, 3072\ns_add_u32 s31, s31, s32\ns_add_u32 s32, s31, 49152')
        for i in range(2):
            for k in range(24):
                r = i * 24 + k
                S('v_fma_f32 %s, -%s, %s, %s' % (v(r), v(E + 4 * i), v(E + 8 + k), v(r)))
                S('v_mul_f32 %s, %s, %s' % (v(r), v(r), v(E + 4 * i + 1)))
            gelu(S, list(range(i * 24, i * 24 + 24)), list(range(X, X + 12)), V_C1)
            for k in range(12): S('v_cvt_pk_bf16_f32 %s, %s, %s' % (v(X + 12 + 12 * i + k), v(i * 24 + 2 * k), v(i * 24 + 2 * k + 1)))
            for j in range(3): S('buffer_store_dwordx4 %s, %s, s[20:23], %s offen offset:%d' % (v(X + 12 + 12 * i + 4 * j, 4), v(V_L16), 's32' if i else 's31', 1024 * j))
    if kind == 'g4':
        srd(S, 16, 40, 0, ACT)
        S('v_and_b32 %s, 15, %s\nv_mul_u32_u24 %s, 1280, %s\nv_lshrrev_b32 %s, 4, %s\nv_lshl_add_u32 %s, %s, 3, %s' % (v(T), v(L), v(T), v(T), v(T + 1), v(L), v(T), v(T + 1), v(T)))
        S('s_mul_i32 s31, s33, 20480\ns_mul_i32 s32, s25, 160\ns_add_u32 s31, s31, s32')
        S.wait(vm='e')
        unpack(S, X, E, 10); unpack(S, X + 20, E + 10, 10)
        for i in range(20): S('v_add_f32 %s, %s, %s' % (v(i), v(i), v(X + i)))
        for i in range(20): S('v_fma_f32 %s, %s, %s, %s' % (v(i), v(i), v(E + 20 + i), v(X + 20 + i)))
        for i in range(10): S('v_cvt_pk_bf16_f32 %s, %s, %s' % (v(X + i), v(2 * i), v(2 * i + 1)))
        for b in range(5): S('buffer_store_dwordx2 %s, %s, s[16:19], s31 offen offset:%d' % (v(X + 2 * b, 2), v(T), 32 * b))
    S.stamp(7)
    S('L_%s_end:\ns_endpgm' % kind)
    acc_off = VB + 32
    return finish(name, S, acc_off + 240, acc_off) + ('grid=(256,1,1) block=(256,1,1) lds=%d' % (4 * REGION),)

def gen_oproj():
    name = 'oproj_kernel'; S = Stream()
    NB, ldw, rowb = 10, 1280, 320
    STG = 128 * rowb
    NST = 12; RING = 3
    V_WO, V_BO, V_RA, V_L16, T = 80, 90, 92, 98, 100
    L = T + 8
    def ACC(tb, nb): return (tb * NB + nb) * 4
    def BF(st, ks, tb): return ((st % 3) * 8 + ks * 2 + tb) * 4
    def AF(pair, k): return 96 + ((pair % 6) * 2 + k) * 4
    S('s_cmp_ge_u32 s2, 256\ns_cbranch_scc1 L_oproj_end')
    S('s_load_dwordx2 s[4:5], s[0:1], %d\ns_load_dwordx2 s[6:7], s[0:1], %d' % (KARG['wo'], KARG['ws']))
    S('v_lshrrev_b32 %s, 6, v0\nv_and_b32 %s, 63, v0' % (v(T), v(L)))
    S('v_readfirstlane_b32 s24, %s' % v(T))
    S('s_and_b32 s3, s2, 1\ns_lshl_b32 s3, s3, 3\ns_bfe_u32 s25, s2, 0x30003\ns_add_u32 s3, s3, s25\ns_bfe_u32 s26, s2, 0x20001\ns_lshr_b32 s25, s2, 6')
    dma_offsets(S, V_WO, 10, 20, ldw, True, L, T)
    S('s_mul_i32 s27, s24, %d' % (32 * rowb))
    S('s_mul_i32 s37, s25, %d\ns_mul_i32 s29, s24, %d\ns_add_u32 s37, s37, s29\ns_mul_i32 s28, s26, %d\ns_add_u32 s28, s28, s37' % (rowb, 32 * ldw, 1536 * ldw))
    S('v_lshlrev_b32 %s, 4, %s' % (v(V_L16), v(L)))
    S('s_lshl_b32 s3, s3, 3\ns_lshl_b32 s29, s24, 1\ns_add_u32 s3, s3, s29')
    S('s_mul_i32 s29, s3, %d\ns_mul_i32 s30, s26, %d\ns_add_u32 s29, s29, s30\ns_add_u32 s29, s29, %d' % (192 * 1024, 48 * 1024, WS_O))
    S('s_waitcnt lgkmcnt(0)')
    S('s_add_u32 s8, s4, s28\ns_addc_u32 s9, s5, 0\ns_sub_u32 s10, %d, s37\ns_mov_b32 s11, 0x20000' % (1536 * ldw))
    srd(S, 12, 6, 's29', 48 * 1024)
    S('s_add_u32 s29, s29, %d' % (192 * 1024))
    srd(S, 20, 6, 's29', 48 * 1024)
    S('s_mov_b32 s34, 0\ns_mov_b32 s35, 0')
    N = lambda t_, tag=None: (t_, tag)
    def loads(st):
        out = []
        base = (st % RING) * STG
        for i in range(10):
            if i % 4 == 0: out.append(('m0', N('s_add_u32 m0, s27, %d' % (base + 1024 * i))))
            out.append(('mem', N('buffer_load_dwordx4 %s, s[8:11], s34 offen offset:%d lds' % (v(V_WO + i), 1024 * (i & 3)), ('L', st))))
        out.append(('s', N('s_add_u32 s34, s34, %d' % (128 * ldw))))
        for ks in range(4):
            for tb in range(2):
                out.append(('mem', N('buffer_load_dwordx4 %s, %s, %s, s35 offen offset:%d' % (a(BF(st, ks, tb), 4), v(V_L16), s(12 + 8 * tb, 4), 1024 * ks), ('L', st))))
        out.append(('s', N('s_add_u32 s35, s35, 4096')))
        return out
    S.stamp(0)
    for st in range(2):
        for k, x in loads(st):
            put(S, x)
            if k == 'm0': S('s_nop 0')
    read_addr(S, V_RA, rowb, True, L, T, None)
    for k in range(2):
        for sl in (1, 2): S('v_add_u32 %s, %d, %s' % (v(V_RA + 2 * sl + k), sl * STG, v(V_RA + k)))
    S('s_mul_i32 s29, s26, %d\ns_mul_i32 s30, s3, 20480\ns_add_u32 s29, s29, s30\ns_mul_i32 s30, s25, 5120\ns_add_u32 s29, s29, s30\ns_add_u32 s29, s29, %d' % (ACT, WS_PART))
    srd(S, 16, 6, 's29', 20480 + 5120)
    G = Gaps(NST * 80, budget=12)
    LA = 3; XB = 66
    def reads(P_):
        st, p = P_ // 20, P_ % 20
        kk, nb = p // 10, p % 10
        return [N('ds_read_b64_tr_b16 %s, %s offset:%d' % (a(AF(P_, k) + 2 * eh, 2), v(V_RA + 2 * (st % RING) + (nb & 1)),
                  ((kk * 2 + k) * 32 + 16 * eh) * rowb + (nb & ~1) * 32), ('A', P_)) for k in range(2) for eh in range(2)]
    for P_ in range(NST * 20):
        st, p = P_ // 20, P_ % 20
        kk, nb = p // 10, p % 10
        for tb in range(2):
            for k in range(2):
                d = v(ACC(tb, nb), 4)
                G.mf[4 * P_ + 2 * tb + k] = '%s %s, %s, %s, %s' % (MF, d, a(AF(P_, k), 4), a(BF(st, kk * 2 + k, tb), 4), '0' if (st == 0 and kk == 0 and k == 0) else d)
    for st in range(NST):
        G.mark[st * 80] = 's%d' % st
    pre = []
    for P_ in range(NST * 20):
        rd = reads(P_)
        if P_ < LA: pre += rd; continue
        st, p = P_ // 20, P_ % 20
        for k, x in enumerate(rd):
            g = 4 * (P_ - LA) + k
            if p == 19: g -= (1, 2, 2, 3)[k]
            if p == 0: g += (2, 1, 1, 0)[k]
            if G.first[g] is None: G.add(g, x, 4, mem=True)
            else: G.add(g, x, 4)
    for P_ in range(1, NST * 20):
        G.add(4 * P_ - 1, ('WAIT', None, ('A', P_)), 4)
    for st in range(NST - 1):
        g = st * 80 + 4 * (20 - LA) + 1
        assert G.first[g] is None
        G.rest[g] += [('WAIT', ('L', st + 1), 0), N('s_barrier')]
    for st in range(2, NST + 2):
        lo = (st - 3) * 80 + 4 * (20 - LA) + 2 if st > 2 else 0
        hi = (st - 2) * 80 + 4 * (20 - LA)
        ls = loads(st); n = sum(1 for k, x in ls if k == 'mem'); j = 0; cur = lo
        if st >= NST + 1: continue
        for k, x in ls:
            if st == NST and cur >= 800: break
            if k == 'mem':
                cur = max(cur, lo + 2 + (j * (hi - lo - 4)) // n); j += 1
                if st == NST and cur >= 800: break
                G.rest[cur].append(x); cur += 1
            elif k == 'm0':
                G.rest[cur].append(x); cur += 1
            else:
                G.rest[cur].append(x)
    S.stamp(1)
    S.wait(vm=('L', 0)); S('s_barrier')
    S.stamp(2)
    for x in pre: put(S, x)
    S('s_mov_b32 s36, 3')
    S.wait(lg=('A', 0))
    G.emit(S)
    S.mark('end')
    S.stamp(5)
    for tb in range(2):
        for i in range(20): S('v_cvt_pk_bf16_f32 %s, %s, %s' % (v(tb * 40 + i), v(tb * 40 + 2 * i), v(tb * 40 + 2 * i + 1)))
        S('s_mov_b32 s30, %d\ns_mov_b32 s31, %d' % (tb * 20480, tb * 20480 + 4096))
        for j in range(5): S('buffer_store_dwordx4 %s, %s, s[16:19], %s offen offset:%d' % (v(tb * 40 + 4 * j, 4), v(V_L16), 's31' if j == 4 else 's30', 1024 * (j & 3)))
    S.stamp(7)
    S('L_oproj_end:\ns_endpgm')
    S.resolve(); S.autonop()
    errs = S.check(name)
    pos = fold(S, [('s%d' % (1 + 3 * k), 's%d' % (4 + 3 * k)) for k in range(3)])
    out = Stream()
    out.ins = S.ins[:pos['s1']]
    out('L_oproj_loop:')
    out.ins += S.ins[pos['s1']:pos['s4']]
    out('s_sub_u32 s36, s36, 1\ns_cmp_lg_u32 s36, 0\ns_cbranch_scc1 L_oproj_loop')
    out.ins += S.ins[pos['s10']:]
    return name, out.text(), kernel_desc(name, 112 + 144, 112), errs, 'grid=(256,1,1) block=(256,1,1) lds=%d' % (RING * STG)

if __name__ == '__main__':
    for k in ('g1', 'g2', 'g3', 'g4'):
        r = gen_ksplit(k); print(r[0], r[3][:5], r[4])
    r = gen_oproj(); print(r[0], r[3][:5], r[4])
```

```python
from asmlib import *
from layout import *
from gen_small import srd, unpack, xsum, f32, LOG2E, meanrstd, code_touch, next_touch
from gen_gemm import read_addr, gelu, GELU_C1
from gen_attn16 import put
MF = 'v_mfma_f32_16x16x32_bf16'

CFG = {'oproj': dict(NW=4, TBW=2, NB=10, CK=2, NCH=24, RING=4, LA=2, wt=WS_TWO, NKS=192, b=WS_O, KT=192, NG=5),
       'g1': dict(NW=4, TBW=1, NB=5, CK=4, NCH=5, RING=5, LA=2, wt=WS_TW1, NKS=20, b=WS_HN, KT=20, NG=3),
       'g2': dict(NW=4, TBW=1, NB=5, CK=4, NCH=5, RING=5, LA=2, wt=WS_TW2, NKS=20, b=WS_G, KT=20, NG=3),
       'g3': dict(NW=8, TBW=1, NB=6, CK=4, NCH=5, RING=5, LA=2, wt=WS_TW3, NKS=20, b=WS_X1, KT=20, NG=3),
       'g4': dict(NW=4, TBW=1, NB=5, CK=4, NCH=12, RING=4, LA=2, wt=WS_TW4, NKS=48, b=WS_U, KT=48, NG=3)}

def gen(kind, opts=None):
    cfg = dict(CFG[kind]); cfg.update((opts or {}).get(kind, {}))
    NW, TBW, NB, CK, NCH, RING, LA, NKS, KT, NG = (cfg[k] for k in ('NW', 'TBW', 'NB', 'CK', 'NCH', 'RING', 'LA', 'NKS', 'KT', 'NG'))
    assert RING >= min(NCH, LA + 2)
    U = CK * NB // NW; CH = CK * NB * 1024; swz = NB % 2 == 0; rowb = NB * 32
    RB = min(NCH, LA + 2)
    SPS = 65536 // CH if 65536 % CH else 65536 // CH
    NSET = -(-RING // SPS)
    name = kind + '_kernel'; S = Stream()
    NACC = TBW * NB * 4
    E = NACC; X = E + 40
    VB = X + 40
    V_BO, V_RA, V_L16, V_TOK, V_C1, T = VB, VB + 4, VB + 10, VB + 11, VB + 12, VB + 13
    L = T + 6; V_TID = L + 1; V_NT = L + 2; NV = (L + 8 + 3) // 4 * 4
    def ACC(tb, nb): return (tb * NB + nb) * 4
    def BF(c, k, tb): return ((c % RB) * CK * TBW + k * TBW + tb) * 4
    AB = RB * CK * TBW * 4
    def AF(G, k): return AB + ((G % NG) * CK + k) * 4
    NA = AB + NG * CK * 4
    N = lambda t_, tag=None: (t_, tag)
    S('s_cmp_ge_u32 s2, 256\ns_cbranch_scc1 L_%s_end' % kind)
    S('s_load_dwordx2 s[6:7], s[0:1], %d' % KARG['ws'])
    if kind == 'g4': S('s_load_dwordx2 s[40:41], s[0:1], %d' % KARG['out'])
    S('v_readfirstlane_b32 s24, v0')
    S('v_and_b32 %s, 63, v0\nv_mov_b32 %s, v0' % (v(L), v(V_TID)))
    code_touch(S, kind, T, T + 1)
    S('s_lshr_b32 s24, s24, 6')
    S('v_lshlrev_b32 %s, 4, %s' % (v(V_L16), v(L)))
    if kind == 'oproj':
        S('s_and_b32 s3, s2, 1\ns_lshl_b32 s3, s3, 3\ns_bfe_u32 s25, s2, 0x30003\ns_add_u32 s3, s3, s25\ns_bfe_u32 s26, s2, 0x20001\ns_lshr_b32 s25, s2, 6')
        S('s_mul_i32 s28, s25, %d\ns_mul_i32 s29, s26, %d\ns_add_u32 s28, s28, s29' % (NKS * NB * 1024, 48 * NB * 1024))
    else:
        lg = 2 if NW * TBW == 4 else 1
        S('s_and_b32 s3, s2, 7\ns_lshl_b32 s3, s3, %d\ns_bfe_u32 s26, s2, 0x%x\ns_add_u32 s3, s3, s26\ns_lshr_b32 s25, s2, %d' % (lg, (lg << 16) | 3, 3 + lg))
        S('s_mul_i32 s28, s25, %d' % (NKS * NB * 1024))
    S('s_mul_i32 s27, s24, %d' % (U * 1024))
    S('s_add_u32 s28, s28, s27\ns_add_u32 s28, s28, %d' % cfg['wt'])
    S('s_mul_i32 s3, s3, %d\ns_mul_i32 s29, s24, %d\ns_add_u32 s33, s3, s29' % (NW * TBW, TBW))
    S('s_mul_i32 s29, s33, %d' % (KT * 1024))
    if kind == 'oproj': S('s_mul_i32 s30, s26, %d\ns_add_u32 s29, s29, s30' % (48 * 1024))
    if kind != 'g2': S('s_add_u32 s29, s29, %d' % cfg['b'])
    S('s_mov_b32 s34, 0\ns_mov_b32 s35, 0\ns_mov_b32 s36, 4096')
    S('s_waitcnt lgkmcnt(0)')
    srd(S, 8, 6, 's28', NCH * CH)
    def wloads(c):
        out = []
        for i in range(U):
            if i % 4 == 0: out.append(('m0', N('s_add_u32 m0, s27, %d' % ((c % RING) * CH + 1024 * i))))
            out.append(('mem', N('buffer_load_dwordx4 %s, s[8:11], %s offen offset:%d lds' % (v(V_L16), 's36' if i >= 4 else 's34', 1024 * (i & 3)), ('L', c))))
        out.append(('s', N('s_add_u32 s34, s34, %d' % CH)))
        if U > 4: out.append(('s', N('s_add_u32 s36, s36, %d' % CH)))
        return out
    def bloads(c):
        out = []
        for k in range(CK):
            ks = c * CK + k
            for tb in range(TBW):
                vo = V_BO + ks // 5 if kind == 'g2' else V_L16
                out.append(('mem', N('buffer_load_dwordx4 %s, %s, %s, s35 offen offset:%d' % (a(BF(c, k, tb), 4), v(vo), s(12 + 4 * tb, 4), 1024 * (ks & 3)), ('L', c))))
            if ks & 3 == 3: out.append(('s', N('s_add_u32 s35, s35, 4096')))
        return out
    def burst(ls):
        for k, x in ls:
            put(S, x)
            if k == 'm0': S('s_nop 0')
    S.stamp(0)
    burst(wloads(0))
    if kind == 'g2':
        srd(S, 12, 6, cfg['b'], ACT)
        S('s_lshl_b32 s31, s33, 4')
        S('v_and_b32 %s, 15, %s\nv_and_b32 %s, 0x300, %s' % (v(T + 3), v(L), v(T + 4), v(V_L16)))
        S('v_add_u32 %s, s31, %s' % (v(T + 3), v(T + 3)))
        S('v_mov_b32 %s, 0x80000000' % v(T + 5))
        for j, d in enumerate((-1, 1, -2, 2)):
            S('v_add_u32 %s, %d, %s' % (v(T + 2), d, v(T + 3)))
            S('v_cmp_gt_i32 vcc, 0, %s' % v(T + 2))
            S('v_lshrrev_b32 %s, 4, %s\nv_and_b32 %s, 15, %s' % (v(V_TOK), v(T + 2), v(T + 2), v(T + 2)))
            S('v_mul_u32_u24 %s, %d, %s' % (v(V_TOK), KT * 1024, v(V_TOK)))
            S('v_lshl_add_u32 %s, %s, 4, %s' % (v(T + 2), v(T + 2), v(T + 4)))
            S('v_add_u32 %s, %s, %s' % (v(T + 2), v(V_TOK), v(T + 2)))
            S('v_cndmask_b32 %s, %s, %s, vcc' % (v(V_BO + j), v(T + 2), v(T + 5)))
    else:
        for tb in range(TBW):
            if tb: S('s_add_u32 s29, s29, %d' % (KT * 1024))
            srd(S, 12 + 4 * tb, 6, 's29', NCH * CK * 1024)
    burst(bloads(0))
    for c in range(1, LA): burst(wloads(c) + bloads(c))
    S.stamp(1)
    read_addr(S, V_RA, rowb, swz, L, T + 2, None)
    np_ = 2 if swz else 1
    for st in range(1, NSET):
        for p in range(np_): S('v_add_u32 %s, %d, %s' % (v(V_RA + st * np_ + p), st * SPS * CH, v(V_RA + p)))
    S('v_mov_b32 %s, %s' % (v(V_C1), f32(GELU_C1)))
    if NB == 5:
        for b in range(5):
            S('s_mul_i32 s31, s25, 5\ns_add_u32 s31, s31, %d\ns_and_b32 s32, s31, 1\ns_lshr_b32 s31, s31, 1\ns_lshl_b32 s31, s31, 10\ns_lshl_b32 s32, s32, 3\ns_add_u32 %s, s31, s32' % (b, s(44 + b)))
        S('s_mul_i32 s31, s33, 20480')
        S('v_add_u32 %s, s31, %s' % (v(V_TOK), v(V_L16)))
    epi = []
    if kind == 'oproj':
        S('s_mul_i32 s29, s26, %d\ns_mul_i32 s30, s33, 20480\ns_add_u32 s29, s29, s30\ns_mul_i32 s30, s25, 5120\ns_add_u32 s29, s29, s30\ns_add_u32 s29, s29, %d' % (ACT, WS_PART))
        srd(S, 20, 6, 's29', 20480 + 5120)
        S('s_mov_b32 s37, %d' % ((NCH - LA - 2) // 4))
    if kind == 'g1': srd(S, 20, 6, WS_G, ACT)
    if kind == 'g2':
        srd(S, 16, 6, WS_H2, ACT); srd(S, 20, 6, WS_X1, ACT); srd(S, 52, 6, WS_ST, 2048 * 64)
        epi = [N('buffer_load_dwordx2 %s, %s, s[16:19], %s offen' % (v(E + 2 * b, 2), v(V_TOK), s(44 + b)), 'e') for b in range(5)]
    if kind == 'g4':
        srd(S, 16, 6, WS_X1, ACT); srd(S, 20, 6, WS_X, ACT); srd(S, 52, 6, WS_MOD + 5 * 2560, 2560); srd(S, 56, 40, 0, ACT)
        S('v_lshrrev_b32 %s, 4, %s\nv_lshlrev_b32 %s, 4, %s\ns_mul_i32 s50, s25, 320' % (v(T + 2), v(L), v(T + 2), v(T + 2)))
        epi = [N('buffer_load_dwordx2 %s, %s, s[16:19], %s offen' % (v(E + 2 * b, 2), v(V_TOK), s(44 + b)), 'e') for b in range(5)]
        epi += [N('buffer_load_dwordx2 %s, %s, s[20:23], %s offen' % (v(E + 10 + 2 * b, 2), v(V_TOK), s(44 + b)), 'e') for b in range(5)]
        epi += [N('buffer_load_dwordx4 %s, %s, s[52:55], s50 offen offset:%d' % (v(E + 20 + 4 * b, 4), v(T + 2), 64 * b), 'e') for b in range(5)]
        S('v_and_b32 %s, 15, %s\nv_mul_u32_u24 %s, 1280, %s\nv_lshrrev_b32 %s, 4, %s\nv_lshl_add_u32 %s, %s, 3, %s' % (v(T + 3), v(L), v(T + 3), v(T + 3), v(T + 4), v(L), v(T + 3), v(T + 4), v(T + 3)))
        S('s_mul_i32 s51, s33, 20480\ns_mul_i32 s32, s25, 160\ns_add_u32 s51, s51, s32')
    if kind == 'g3':
        srd(S, 16, 6, WS_ST, 2048 * 64); srd(S, 52, 6, WS_CS3, 1536 * 4); srd(S, 20, 6, WS_U, 2048 * 1536 * 2)
        S('v_and_b32 %s, 15, %s\nv_lshrrev_b32 %s, 4, %s\nv_lshlrev_b32 %s, 4, %s\nv_lshl_add_u32 %s, %s, 6, %s' % (v(T + 2), v(L), v(T + 3), v(L), v(T + 3), v(T + 3), v(T + 2), v(T + 2), v(T + 3)))
        S('s_lshl_b32 s50, s33, 10\ns_mul_i32 s51, s25, 384')
        epi = [N('buffer_load_dwordx4 %s, %s, s[16:19], s50 offen' % (v(E, 4), v(T + 2)), 'e')]
        epi += [N('buffer_load_dwordx4 %s, %s, s[52:55], s51 offen offset:%d' % (v(E + 4 + 4 * b, 4), v(T + 3), 64 * b), 'e') for b in range(6)]
        S('s_mul_i32 s31, s33, 49152\ns_mul_i32 s32, s25, 3072\ns_add_u32 s49, s31, s32')
    nxt = {'oproj': (0, 0, 'mid'), 'g1': (WS_TW2, 640 * 1280, 'g2'), 'g2': (WS_TW3, 640 * 3072, 'g3'), 'g3': (WS_TW4, 640 * 3072, 'g4')}.get(kind)
    if nxt and (opts or {}).get('codenext', True):
        epi += next_touch(S, nxt[0], nxt[1] if kind in (opts or {}).get('warm', ()) else 0, NW * 64, V_NT, V_NT + 2, 56, V_TID, nxt[2])
    def reads(G):
        c, nb = G // NB, G % NB
        sl = c % RING
        reg = V_RA + (sl // SPS) * np_ + (nb & 1 if swz else 0)
        return [N('ds_read_b64_tr_b16 %s, %s offset:%d' % (a(AF(G, k) + 2 * eh, 2), v(reg),
                  (sl % SPS) * CH + k * NB * 1024 + 16 * eh * rowb + ((nb & ~1) if swz else nb) * 32), ('A', G)) for k in range(CK) for eh in range(2)]
    GL = NG - 1
    RPG = 2 // TBW
    NGR = NCH * NB
    rq = []; vq = []
    def sync(c):
        S.mark('s%d' % c)
        S.wait(vm=('L', c)); S('s_barrier')
        if c == 0: S.stamp(2)
        if c == NCH - 1: S.stamp(4)
        if c + LA < NCH: vq.extend(wloads(c + LA) + bloads(c + LA))
        if c + LA == NCH: vq.extend(('mem', x) for x in epi)
    sync(0)
    for G in range(GL):
        for x in reads(G): put(S, x)
    per = NB * CK * TBW
    since = 0
    for G in range(NGR):
        c, nb = G // NB, G % NB
        if nb == NB - GL and c + 1 < NCH:
            assert not vq and not rq
            sync(c + 1); since = 0
        if G + GL < NGR: rq = reads(G + GL)
        S.wait(lg=('A', G))
        nmem = U + CK * TBW
        for tb in range(TBW):
            for k in range(CK):
                d = v(ACC(tb, nb), 4)
                S('%s %s, %s, %s, %s' % (MF, d, a(AF(G, k), 4), a(BF(c, k, tb), 4), '0' if (c == 0 and k == 0) else d))
                for _ in range(RPG):
                    if rq: put(S, rq.pop(0))
                since += 1
                span = per - (GL * CK * TBW if c == 0 else 0) - 2
                total = max(nmem, len(epi))
                while vq:
                    left = sum(1 for kk, _ in vq if kk == 'mem')
                    if vq[0][0] == 'mem' and (total - left) * span > since * total: break
                    kk, x = vq.pop(0); put(S, x)
                    if kk == 'm0': S('s_nop 0')
    S.mark('end')
    S.stamp(5)
    if kind == 'oproj':
        for tb in range(2):
            for i in range(20): S('v_cvt_pk_bf16_f32 %s, %s, %s' % (v(tb * 40 + i), v(tb * 40 + 2 * i), v(tb * 40 + 2 * i + 1)))
            S('s_mov_b32 s30, %d\ns_mov_b32 s31, %d' % (tb * 20480, tb * 20480 + 4096))
            for j in range(5): S('buffer_store_dwordx4 %s, %s, s[20:23], %s offen offset:%d' % (v(tb * 40 + 4 * j, 4), v(V_L16), 's31' if j == 4 else 's30', 1024 * (j & 3)))
    if kind == 'g1':
        gelu(S, list(range(20)), list(range(X, X + 10)), V_C1)
        for i in range(10): S('v_cvt_pk_bf16_f32 %s, %s, %s' % (v(X + i), v(2 * i), v(2 * i + 1)))
        for b in range(5): S('buffer_store_dwordx2 %s, %s, s[20:23], %s offen' % (v(X + 2 * b, 2), v(V_TOK), s(44 + b)))
    if kind == 'g2':
        S.wait(vm='e')
        unpack(S, X, E, 10)
        for i in range(20): S('v_add_f32 %s, %s, %s' % (v(i), v(i), v(X + i)))
        for i in range(10): S('v_cvt_pk_bf16_f32 %s, %s, %s' % (v(X + 20 + i), v(2 * i), v(2 * i + 1)))
        for b in range(5): S('buffer_store_dwordx2 %s, %s, s[20:23], %s offen' % (v(X + 20 + 2 * b, 2), v(V_TOK), s(44 + b)))
        unpack(S, 0, X + 20, 10)
        S('v_add_f32 %s, v0, v1\nv_mul_f32 %s, v0, v0\nv_add_f32 %s, v2, v3\nv_mul_f32 %s, v1, v1' % (v(X), v(X + 1), v(X + 2), v(X + 3)))
        for i in range(2, 20):
            o = X + 2 * (i & 1)
            if i >= 4: S('v_add_f32 %s, %s, %s' % (v(o), v(o), v(i)))
            S('v_fmac_f32 %s, %s, %s' % (v(o + 1), v(i), v(i)))
        S('v_add_f32 %s, %s, %s\nv_add_f32 %s, %s, %s' % (v(X), v(X), v(X + 2), v(X + 1), v(X + 1), v(X + 3)))
        xsum(S, [X, X + 1], X + 2, (32, 16))
        S('v_and_b32 %s, 15, %s\nv_lshlrev_b32 %s, 6, %s\ns_lshl_b32 s31, s33, 10\ns_lshl_b32 s32, s25, 3\ns_add_u32 s31, s31, s32' % (v(T + 2), v(L), v(T + 2), v(T + 2)))
        S('buffer_store_dwordx2 %s, %s, s[52:55], s31 offen' % (v(X, 2), v(T + 2)))
    if kind == 'g3':
        S.wait(vm='e')
        S('v_add_f32 %s, %s, %s\nv_add_f32 %s, %s, %s' % (v(E), v(E), v(E + 2), v(E + 1), v(E + 1), v(E + 3)))
        xsum(S, [E, E + 1], X, (32, 16))
        meanrstd(S, E, X)
        for k in range(24): S('v_fma_f32 %s, -%s, %s, %s' % (v(k), v(E), v(E + 4 + k), v(k)))
        for k in range(24): S('v_mul_f32 %s, %s, %s' % (v(k), v(k), v(E + 1)))
        for j in range(3):
            gelu(S, list(range(8 * j, 8 * j + 8)), list(range(X, X + 8)), V_C1)
            for k in range(4): S('v_cvt_pk_bf16_f32 %s, %s, %s' % (v(X + 12 + 4 * j + k), v(8 * j + 2 * k), v(8 * j + 2 * k + 1)))
            S('buffer_store_dwordx4 %s, %s, s[20:23], s49 offen offset:%d' % (v(X + 12 + 4 * j, 4), v(V_L16), 1024 * j))
    if kind == 'g4':
        S.wait(vm='e')
        unpack(S, X, E, 10); unpack(S, X + 20, E + 10, 10)
        for i in range(20): S('v_add_f32 %s, %s, %s' % (v(i), v(i), v(X + i)))
        for i in range(20): S('v_fma_f32 %s, %s, %s, %s' % (v(i), v(i), v(E + 20 + i), v(X + 20 + i)))
        for i in range(10): S('v_cvt_pk_bf16_f32 %s, %s, %s' % (v(X + i), v(2 * i), v(2 * i + 1)))
        for b in range(5): S('buffer_store_dwordx2 %s, %s, s[56:59], s51 offen offset:%d' % (v(X + 2 * b, 2), v(T + 3), 32 * b))
    S.stamp(7)
    S('L_%s_end:\ns_endpgm' % kind)
    S.resolve(); S.autonop()
    errs = S.check(name)
    out = S
    if kind == 'oproj':
        trips = (NCH - LA - 2) // 4
        pos = fold(S, [('s%d' % (2 + 4 * k), 's%d' % (6 + 4 * k)) for k in range(trips)])
        out = Stream()
        out.ins = S.ins[:pos['s2']]
        out('L_oproj_loop:')
        out.ins += S.ins[pos['s2']:pos['s6']]
        out('s_sub_u32 s37, s37, 1\ns_cmp_lg_u32 s37, 0\ns_cbranch_scc1 L_oproj_loop')
        out.ins += S.ins[pos['s%d' % (2 + 4 * trips)]:]
    return name, out.text(), kernel_desc(name, NV + NA, NV), errs, 'grid=(256,1,1) block=(%d,1,1) lds=%d' % (NW * 64, RING * CH)

if __name__ == '__main__':
    for k in CFG:
        r = gen(k); print(r[0], r[3][:5], r[4], len(r[1].split('\n')), r[2].split('\n')[1:4])
```

```python
from asmlib import *
from layout import *
import struct
def f32(x): return '0x%08x' % struct.unpack('<I', struct.pack('<f', x))[0]
LOG2E = 1.4426950408889634

def srd(S, r, base, off, size):
    if off == 0: S('s_mov_b32 %s, %s\ns_mov_b32 %s, %s' % (s(r), s(base), s(r + 1), s(base + 1)))
    else: S('s_add_u32 %s, %s, %s\ns_addc_u32 %s, %s, 0' % (s(r), s(base), off, s(r + 1), s(base + 1)))
    S('s_mov_b32 %s, %s\ns_mov_b32 %s, 0x20000' % (s(r + 2), size, s(r + 3)))

def unpack(S, dst, src, n):
    for i in range(n):
        S('v_lshlrev_b32 %s, 16, %s' % (v(dst + 2 * i), v(src + i)))
        S('v_and_b32 %s, 0xffff0000, %s' % (v(dst + 2 * i + 1), v(src + i)))

def xsum(S, regs, tmp, steps, op='v_add_f32'):
    for st in steps:
        if st in (32, 16):
            for k, r in enumerate(regs): S('v_mov_b32 %s, %s' % (v(tmp + k), v(r)))
            for k, r in enumerate(regs): S('v_permlane%d_swap_b32 %s, %s' % (st, v(r), v(tmp + k)))
            for k, r in enumerate(regs): S('%s %s, %s, %s' % (op, v(r), v(r), v(tmp + k)))
        else:
            for k, r in enumerate(regs): S('%s_dpp %s, %s, %s row_ror:%d row_mask:0xf bank_mask:0xf' % (op, v(r), v(r), v(r), st))

def code_touch(S, label, t, dst):
    S('s_getpc_b64 s[42:43]\nL_%s_pc:' % label)
    S('v_lshlrev_b32 %s, 6, v0' % v(t))
    S('v_min_u32 %s, L_%s_end-L_%s_pc, %s' % (v(t), label, label, v(t)))
    S('global_load_dword %s, %s, s[42:43]' % (v(dst), v(t)), tag='code')

def next_touch(S, base, size, nthr, t, dst, sq, tid, code=None):
    out = []
    if size:
        srd(S, sq, 6, base, size)
        S('s_lshr_b32 s31, s2, 3\ns_mul_i32 s31, s31, %d' % (nthr * 128))
        S('v_lshlrev_b32 %s, 7, %s' % (v(t), v(tid)))
        S('v_add_u32 %s, s31, %s' % (v(t), v(t)))
    for j in range(-(-size // (32 * nthr * 128))):
        S('s_mov_b32 %s, %d' % (s(62 + j), j * 32 * nthr * 128))
        out.append(('buffer_load_dword %s, %s, %s, %s offen' % (v(dst + j), v(t), s(sq, 4), s(62 + j)), 'touch'))
    if code:
        S('s_getpc_b64 s[38:39]\nL_%s_npc:' % code)
        S('s_add_u32 s38, s38, %s_kernel-L_%s_npc\ns_addc_u32 s39, s39, 0' % (code, code))
        S('v_lshlrev_b32 %s, 6, %s' % (v(t + 1), v(tid)))
        S('v_min_u32 %s, L_%s_end-%s_kernel, %s' % (v(t + 1), code, code, v(t + 1)))
        out.append(('global_load_dword %s, %s, s[38:39]' % (v(dst + 2), v(t + 1)), 'touch'))
    return out

def finish(name, S, vgpr, accum=None):
    S.resolve(); S.autonop()
    errs = S.check(name)
    return name, S.text(), kernel_desc(name, vgpr, accum or ((vgpr + 3) // 4 * 4)), errs

def wq_touch(S, lo, hi, nthr, t, dst, sq):
    S('s_lshr_b32 s44, s2, 3\ns_mul_i32 s44, s44, %d\ns_and_b32 s45, s2, 7\ns_mul_i32 s45, s45, 1536\ns_add_u32 s45, s45, %d' % (nthr, lo * 12288))
    S('v_add_u32 %s, s44, v0' % v(t))
    S('v_min_u32 %s, %d, %s' % (v(t), (hi - lo) * 12 - 1, v(t)))
    S('v_mul_u32_u24 %s, 43691, %s\nv_lshrrev_b32 %s, 19, %s' % (v(t + 1), v(t), v(t + 1), v(t + 1)))
    S('v_mul_u32_u24 %s, 12, %s\nv_sub_u32 %s, %s, %s\nv_lshlrev_b32 %s, 7, %s' % (v(t + 2), v(t + 1), v(t), v(t), v(t + 2), v(t), v(t)))
    S('v_mul_u32_u24 %s, 12288, %s\nv_add3_u32 %s, %s, %s, s45' % (v(t + 1), v(t + 1), v(t), v(t), v(t + 1)))
    assert 32 * nthr >= (hi - lo) * 12
    return ('buffer_load_dword %s, %s, %s, 0 offen' % (v(dst), v(t), s(sq, 4)), 'touch')

def gen_mod(opts=None):
    opts = opts or {}
    name = 'mod_kernel'; S = Stream()
    S('s_cmp_ge_u32 s2, 256\ns_cbranch_scc1 L_mod_end')
    S('s_load_dwordx4 s[8:11], s[0:1], %d\ns_load_dwordx2 s[6:7], s[0:1], %d\ns_load_dwordx2 s[4:5], s[0:1], %d\ns_load_dwordx2 s[12:13], s[0:1], %d' % (KARG['c'], KARG['w3'], KARG['wq'], KARG['ws']))
    S('v_and_b32 v4, 7, v0\nv_lshrrev_b32 v5, 3, v0')
    S('s_mul_i32 s15, s2, 171\ns_lshr_b32 s15, s15, 9\ns_mul_i32 s3, s15, 3\ns_sub_u32 s3, s2, s3')
    assert all((i * 171) >> 9 == i // 3 for i in range(256))
    S('s_mov_b32 s14, 7680\ns_mov_b32 s34, 214\ns_cmp_eq_u32 s3, 2\ns_cmov_b32 s34, 212\ns_cmp_ge_u32 s2, 252\ns_cmov_b32 s34, 0')
    S('s_cmp_ge_u32 s15, 60\ns_cmov_b32 s14, 3072\ns_cselect_b32 s29, 60, 0\ns_cselect_b64 s[30:31], -1, 0')
    S('s_sub_u32 s29, s15, s29\ns_lshl_b32 s29, s29, 7\ns_mul_i32 s35, s3, 214\ns_mul_i32 s28, s35, s14\ns_add_u32 s28, s28, s29')
    S('v_mul_lo_u32 v6, v5, s14\nv_lshlrev_b32 v7, 1, v5\nv_lshl_add_u32 v6, v4, 4, v6')
    S('s_mul_i32 s22, s34, s14\ns_sub_u32 s22, s22, s29\ns_max_i32 s22, s22, 0\ns_mov_b32 s23, 0x20000')
    S('s_lshl_b32 s26, s34, 1\ns_mov_b32 s27, 0x20000\ns_lshl_b32 s35, s35, 1\ns_lshl_b32 s14, s14, 5\ns_mov_b32 s33, 0')
    S('s_waitcnt lgkmcnt(0)')
    S('s_cmp_ge_u32 s15, 60\ns_cselect_b32 s20, s6, s10\ns_cselect_b32 s21, s7, s11')
    S('s_add_u32 s20, s20, s28\ns_addc_u32 s21, s21, 0\ns_add_u32 s24, s8, s35\ns_addc_u32 s25, s9, 0')
    S.stamp(0)
    for i in range(7):
        S('buffer_load_dwordx4 %s, v6, s[20:23], s33 offen' % v(8 + 4 * i, 4), tag=('w', i))
        S('s_add_u32 s33, s33, s14')
        if i == 0:
            for j in range(7): S('buffer_load_ushort %s, v7, s[24:27], 0 offen offset:%d' % (v(36 + j), 64 * j), tag='c')
    rows = opts.get('trows', 640)
    if rows:
        srd(S, 16, 4, 0, 640 * 12288)
        S(*wq_touch(S, 0, rows, 256, 44, 62, 16))
    S('s_mul_i32 s28, s3, 21504\ns_lshl_b32 s29, s15, 8\ns_add_u32 s28, s28, s29\ns_add_u32 s28, s28, %d' % WS_MP)
    srd(S, 36, 12, 's28', 256)
    S('s_cmp_ge_u32 s2, 252\ns_cmov_b32 s38, 0')
    S.stamp(1)
    S.wait(vm='c')
    cs = list(range(36, 43))
    for c in cs: S('v_lshlrev_b32 %s, 16, %s' % (v(c), v(c)))
    for c in cs: S('v_mul_f32 %s, %s, %s' % (v(c + 8), f32(-LOG2E), v(c)))
    for c in cs: S('v_exp_f32 %s, %s' % (v(c + 8), v(c + 8)))
    for c in cs: S('v_add_f32 %s, 1.0, %s' % (v(c + 8), v(c + 8)))
    for c in cs: S('v_rcp_f32 %s, %s' % (v(c + 8), v(c + 8)))
    for c in cs: S('v_mul_f32 %s, %s, %s' % (v(c), v(c), v(c + 8)))
    for c in cs: S('v_cvt_pk_bf16_f32 %s, %s, %s' % (v(c), v(c), v(c)))
    for c in cs: S('v_lshlrev_b32 %s, 16, %s' % (v(c), v(c)))
    for c in cs: S('v_cndmask_b32 %s, %s, 1.0, s[30:31]' % (v(c), v(c)))
    S.stamp(2)
    for i in range(7):
        S.wait(vm=('w', i))
        unpack(S, 44, 8 + 4 * i, 4)
        for j in range(8):
            S(('v_mul_f32 %s, %s, %s' if i == 0 else 'v_fmac_f32 %s, %s, %s') % (v(52 + j), v(44 + j), v(36 + i)))
    S.stamp(3)
    xsum(S, list(range(52, 60)), 44, (32, 16, 8))
    S('v_lshrrev_b32 v2, 6, v0\nv_lshlrev_b32 v2, 8, v2\nv_lshl_add_u32 v2, v4, 5, v2')
    S('ds_write_b128 v2, v[52:55]\nds_write_b128 v2, v[56:59] offset:16')
    S('v_and_b32 v3, 63, v0\nv_lshlrev_b32 v3, 2, v3')
    S('s_waitcnt lgkmcnt(0)\ns_barrier')
    for w in range(4): S('ds_read_b32 %s, v3 offset:%d' % (v(8 + w), 256 * w))
    S('v_lshlrev_b32 v3, 2, v0')
    S('s_waitcnt lgkmcnt(0)')
    S('v_add_f32 v8, v8, v9\nv_add_f32 v10, v10, v11\nv_add_f32 v8, v8, v10')
    S.stamp(4)
    S('buffer_store_dword v8, v3, s[36:39], 0 offen')
    S('L_mod_end:\ns_endpgm')
    return finish(name, S, 64) + ('grid=(256,1,1) block=(256,1,1) lds=1024',)

def lane8(S):
    S('v_lshrrev_b32 v4, 6, v0\nv_and_b32 v1, 7, v0\nv_bfe_u32 v2, v0, 3, 2\nv_bfe_u32 v3, v0, 5, 1')
    S('v_lshl_add_u32 v3, v4, 2, v3')
    S('s_and_b32 s3, s2, 7\ns_lshl_b32 s3, s3, 5\ns_lshr_b32 s34, s2, 3\ns_add_u32 s3, s3, s34\ns_lshl_b32 s3, s3, 3')
    S('s_lshr_b32 s34, s3, 4\ns_mul_i32 s34, s34, 20480\ns_and_b32 s35, s3, 8\ns_lshl_b32 s35, s35, 4\ns_add_u32 s34, s34, s35')
    S('v_lshlrev_b32 v5, 10, v3\nv_lshl_add_u32 v5, v2, 8, v5\nv_lshl_add_u32 v5, v1, 4, v5\nv_add_u32 v5, s34, v5')
    S('v_lshlrev_b32 v7, 6, v1\nv_lshl_add_u32 v6, v4, 3, v7')

def stats(S, x, acc, tmp, ldsoff, tag):
    S('v_add_f32 %s, %s, %s' % (v(acc), v(x), v(x + 1)))
    S('v_mul_f32 %s, %s, %s' % (v(acc + 1), v(x), v(x)))
    S('v_add_f32 %s, %s, %s' % (v(tmp), v(x + 2), v(x + 3)))
    S('v_mul_f32 %s, %s, %s' % (v(tmp + 1), v(x + 1), v(x + 1)))
    for i in range(2, 16):
        if i >= 4: S('v_add_f32 %s, %s, %s' % (v((acc, tmp)[i & 1]), v((acc, tmp)[i & 1]), v(x + i)))
        S('v_fmac_f32 %s, %s, %s' % (v((acc, tmp)[i & 1] + 1), v(x + i), v(x + i)))
    S('v_add_f32 %s, %s, %s\nv_add_f32 %s, %s, %s' % (v(acc), v(acc), v(tmp), v(acc + 1), v(acc + 1), v(tmp + 1)))
    xsum(S, [acc, acc + 1], tmp, (32, 16, 8))
    S('ds_write_b64 v6, %s offset:%d' % (v(acc, 2), ldsoff))
    S('s_waitcnt lgkmcnt(0)\ns_barrier')
    S('ds_read_b128 %s, v7 offset:%d\nds_read_b128 %s, v7 offset:%d\nds_read_b64 %s, v7 offset:%d' % (v(tmp, 4), ldsoff, v(tmp + 4, 4), ldsoff + 16, v(tmp + 8, 2), ldsoff + 32))
    S('s_waitcnt lgkmcnt(0)')
    for k in range(2):
        S('v_add_f32 %s, %s, %s' % (v(tmp + k), v(tmp + k), v(tmp + 2 + k)))
        S('v_add_f32 %s, %s, %s' % (v(tmp + 4 + k), v(tmp + 4 + k), v(tmp + 6 + k)))
        S('v_add_f32 %s, %s, %s' % (v(tmp + k), v(tmp + k), v(tmp + 8 + k)))
        S('v_add_f32 %s, %s, %s' % (v(acc + k), v(tmp + k), v(tmp + 4 + k)))
    meanrstd(S, acc, tmp)

def meanrstd(S, acc, tmp):
    S('v_mul_f32 %s, %s, %s' % (v(acc), f32(1 / 640), v(acc)))
    S('v_mul_f32 %s, %s, %s' % (v(acc + 1), f32(1 / 640), v(acc + 1)))
    S('v_fma_f32 %s, -%s, %s, %s' % (v(acc + 1), v(acc), v(acc), v(acc + 1)))
    S('v_max_f32 %s, 0, %s' % (v(acc + 1), v(acc + 1)))
    S('v_add_f32 %s, %s, %s' % (v(acc + 1), f32(1e-5), v(acc + 1)))
    S('v_rsq_f32 %s, %s' % (v(acc + 1), v(acc + 1)))

def gen_ln1(opts=None):
    opts = opts or {}
    name = 'ln1_kernel'; S = Stream()
    S('s_cmp_ge_u32 s2, 256\ns_cbranch_scc1 L_ln1_end')
    S('s_load_dwordx2 s[4:5], s[0:1], %d\ns_load_dwordx2 s[6:7], s[0:1], %d\ns_load_dwordx2 s[20:21], s[0:1], %d' % (KARG['x'], KARG['ws'], KARG['wq']))
    lane8(S)
    S('v_add_u32 v8, s3, v1\nv_mul_u32_u24 v8, 1280, v8\nv_lshlrev_b32 v9, 6, v3\nv_lshl_add_u32 v9, v2, 4, v9\nv_add_u32 v8, v8, v9\nv_lshlrev_b32 v9, 1, v9')
    S('s_waitcnt lgkmcnt(0)')
    srd(S, 8, 4, 0, ACT); srd(S, 12, 6, WS_MP, 3 * 21504); srd(S, 16, 6, WS_H, ACT)
    for i in range(2): S('buffer_load_dwordx4 %s, v8, s[8:11], 0 offen offset:%d' % (v(10 + 4 * i, 4), 128 * i), tag='x')
    S('v_lshlrev_b32 v80, 4, v0\nv_min_u32 v81, 48, v80\ns_lshl_b32 s24, s2, 6\ns_add_u32 s24, s24, 5120\nv_add_u32 v81, s24, v81')
    S('s_mov_b32 s25, 0\ns_mov_b32 s26, 21504\ns_mov_b32 s27, 43008')
    for q in range(3): S('buffer_load_dwordx4 %s, v80, s[12:15], %s offen' % (v(36 + 4 * q, 4), s(25 + q)), tag='m')
    for q in range(3): S('buffer_load_dwordx4 %s, v81, s[12:15], %s offen' % (v(48 + 4 * q, 4), s(25 + q)), tag='m2')
    rows = opts.get('trows', 640)
    if rows < 640 and not opts.get('notouch'):
        srd(S, 40, 20, 0, 640 * 12288)
        S(*wq_touch(S, rows, 640, 320, 82, 85, 40))
    S('s_add_u32 s24, s24, %d' % WS_MOD)
    srd(S, 28, 6, 's24', 64)
    S('s_cmp_ge_u32 s2, 160\ns_cselect_b64 s[38:39], -1, 0')
    S.stamp(1)
    S.wait(vm='m')
    S.stamp(2)
    def fin(b):
        for i in range(4): S('v_add_f32 %s, %s, %s' % (v(b + i), v(b + i), v(b + 4 + i)))
        for i in range(4): S('v_add_f32 %s, %s, %s' % (v(b + i), v(b + i), v(b + 8 + i)))
        for i in range(2): S('v_cvt_pk_bf16_f32 %s, %s, %s' % (v(b + 8 + i), v(b + 2 * i), v(b + 2 * i + 1)))
        unpack(S, b + 4, b + 8, 2)
    fin(36)
    S('ds_write_b128 v80, v[40:43] offset:512')
    unpack(S, 20, 10, 8)
    S.wait(vm='m2')
    fin(48)
    for i in range(4): S('v_cndmask_b32 %s, %s, %s, s[38:39]' % (v(52 + i), v(52 + i), v(48 + i)))
    S('buffer_store_dwordx4 v[52:55], v80, s[28:31], 0 offen')
    stats(S, 20, 18, 68, 0, 'a')
    for a_ in range(2):
        for i in range(2):
            for h in range(2): S('ds_read_b128 %s, v9 offset:%d' % (v(36 + 16 * a_ + 8 * i + 4 * h, 4), 512 + 2560 * a_ + 256 * i + 16 * h))
    c = 192 ** -0.5 * LOG2E
    S('s_mov_b32 s36, %s' % f32(c))
    S('v_mul_f32 v18, v18, v19')
    S.stamp(3)
    S('s_waitcnt lgkmcnt(0)')
    for i in range(16):
        S('v_fma_f32 %s, %s, v19, -v18' % (v(20 + i), v(20 + i)))
        S('v_fma_f32 %s, %s, s36, s36' % (v(52 + i), v(52 + i)))
        S('v_mul_f32 %s, s36, %s' % (v(36 + i), v(36 + i)))
        S('v_fma_f32 %s, %s, %s, %s' % (v(20 + i), v(20 + i), v(52 + i), v(36 + i)))
    for i in range(8): S('v_cvt_pk_bf16_f32 %s, %s, %s' % (v(10 + i), v(20 + 2 * i), v(21 + 2 * i)))
    for i in range(2): S('buffer_store_dwordx4 %s, v5, s[16:19], 0 offen offset:%d' % (v(10 + 4 * i, 4), 2048 * i))
    S('L_ln1_end:\ns_endpgm')
    return finish(name, S, 88) + ('grid=(256,1,1) block=(320,1,1) lds=5632',)

def stats8(S, x, acc, tmp, ldsoff):
    S('v_add_f32 %s, %s, %s' % (v(acc), v(x), v(x + 1)))
    S('v_mul_f32 %s, %s, %s' % (v(acc + 1), v(x), v(x)))
    S('v_add_f32 %s, %s, %s' % (v(tmp), v(x + 2), v(x + 3)))
    S('v_mul_f32 %s, %s, %s' % (v(tmp + 1), v(x + 1), v(x + 1)))
    for i in range(2, 8):
        if i >= 4: S('v_add_f32 %s, %s, %s' % (v((acc, tmp)[i & 1]), v((acc, tmp)[i & 1]), v(x + i)))
        S('v_fmac_f32 %s, %s, %s' % (v((acc, tmp)[i & 1] + 1), v(x + i), v(x + i)))
    S('v_add_f32 %s, %s, %s\nv_add_f32 %s, %s, %s' % (v(acc), v(acc), v(tmp), v(acc + 1), v(acc + 1), v(tmp + 1)))
    xsum(S, [acc, acc + 1], tmp, (32, 16, 8))
    S('ds_write_b64 v6, %s offset:%d' % (v(acc, 2), ldsoff))
    S('s_waitcnt lgkmcnt(0)\ns_barrier')
    for i in range(5): S('ds_read_b128 %s, v7 offset:%d' % (v(tmp + 4 * i, 4), ldsoff + 16 * i), tag=('st', ldsoff, i))
    for i in range(1, 5):
        S.wait(lg=('st', ldsoff, i))
        for k in range(4): S('v_add_f32 %s, %s, %s' % (v(tmp + k), v(tmp + k), v(tmp + 4 * i + k)))
    for k in range(2): S('v_add_f32 %s, %s, %s' % (v(acc + k), v(tmp + k), v(tmp + 2 + k)))
    meanrstd(S, acc, tmp)

def gen_mid(opts=None):
    opts = opts or {}
    name = 'mid_kernel'; S = Stream()
    S('s_cmp_ge_u32 s2, 256\ns_cbranch_scc1 L_mid_end')
    S('s_load_dwordx2 s[4:5], s[0:1], %d\ns_load_dwordx2 s[6:7], s[0:1], %d' % (KARG['x'], KARG['ws']))
    if not opts.get('mid_noct'): code_touch(S, 'mid', 10, 11)
    S('v_lshrrev_b32 v4, 6, v0\nv_and_b32 v1, 7, v0\nv_bfe_u32 v2, v0, 4, 2\nv_bfe_u32 v3, v0, 3, 1\nv_lshl_add_u32 v3, v4, 1, v3')
    S('s_and_b32 s3, s2, 7\ns_lshl_b32 s3, s3, 5\ns_lshr_b32 s34, s2, 3\ns_add_u32 s3, s3, s34\ns_lshl_b32 s3, s3, 3')
    S('s_lshr_b32 s34, s3, 4\ns_mul_i32 s34, s34, 20480\ns_and_b32 s35, s3, 8\ns_lshl_b32 s35, s35, 4\ns_add_u32 s34, s34, s35')
    S('v_lshlrev_b32 v5, 10, v3\nv_lshl_add_u32 v5, v2, 8, v5\nv_lshl_add_u32 v5, v1, 4, v5\nv_add_u32 v5, s34, v5')
    S('v_lshlrev_b32 v9, 4, v0')
    S('s_mov_b32 s24, 0\ns_mov_b32 s25, %d\ns_mov_b32 s26, %d\ns_mov_b32 s27, %d' % (ACT, 2 * ACT, 3 * ACT))
    S('s_waitcnt lgkmcnt(0)')
    srd(S, 16, 6, WS_MOD + 2 * 2560, 3 * 2560); srd(S, 12, 6, WS_PART, 4 * ACT)
    S.stamp(0)
    S('buffer_load_dwordx4 v[12:15], v9, s[16:19], 0 offen', tag='m')
    PB = 16
    if opts.get('mid_nop'): S('s_mov_b32 s14, 0')
    for q in range(4): S('buffer_load_dwordx4 %s, v5, s[12:15], %s offen' % (v(PB + 4 * q, 4), s(24 + q)), tag=('p', q))
    srd(S, 8, 4, 0, ACT)
    S('v_add_u32 v8, s3, v1\nv_mul_u32_u24 v8, 1280, v8\nv_lshl_add_u32 v8, v3, 6, v8')
    S('v_bfe_u32 v32, v0, 4, 1\nv_lshl_add_u32 v8, v32, 5, v8\nv_bfe_u32 v32, v0, 5, 1\nv_lshl_add_u32 v8, v32, 4, v8')
    S('buffer_load_dwordx4 v[32:35], v8, s[8:11], 0 offen', tag='x')
    if opts.get('codenext', True):
        for x_ in next_touch(S, None, 0, 640, 60, 60, 40, 0, 'g1'): S(*x_)
    srd(S, 20, 6, WS_X, WS_HN - WS_X + ACT)
    S('v_mul_u32_u24 v7, 144, v1\nv_lshl_add_u32 v6, v4, 3, v7')
    S('v_lshlrev_b32 v8, 7, v3\nv_lshl_add_u32 v8, v2, 4, v8')
    MO = 2304
    S.stamp(1)
    S.wait(vm='m')
    S('ds_write_b128 v9, v[12:15] offset:%d' % MO)
    S('s_waitcnt lgkmcnt(0)\ns_barrier')
    MB = 36
    for a_ in range(3):
        for h in range(2): S('ds_read_b128 %s, v8 offset:%d' % (v(MB + 8 * a_ + 4 * h, 4), MO + 2560 * a_ + 64 * h), tag='mb')
    A, Tm, AC = 64, 72, 92
    S.stamp(2)
    S.wait(vm=('p', 0))
    unpack(S, A, PB, 4)
    for q in range(1, 4):
        S.wait(vm=('p', q))
        unpack(S, Tm, PB + 4 * q, 4)
        for i in range(8): S('v_add_f32 %s, %s, %s' % (v(A + i), v(A + i), v(Tm + i)))
    S.stamp(3)
    S.wait(vm='x', lg='mb')
    S.stamp(4)
    S('v_permlane16_swap_b32 v32, v34\nv_permlane16_swap_b32 v33, v35')
    unpack(S, Tm, 32, 4)
    for i in range(8): S('v_fma_f32 %s, %s, %s, %s' % (v(A + i), v(A + i), v(MB + i), v(Tm + i)))
    for i in range(4): S('v_cvt_pk_bf16_f32 %s, %s, %s' % (v(PB + i), v(A + 2 * i), v(A + 2 * i + 1)))
    unpack(S, A, PB, 4)
    sf = opts.get('midsf', '')
    S('buffer_store_dwordx4 %s, v5, s[20:23], 0 offen %s' % (v(PB, 4), sf))
    for i in range(8): S('v_add_f32 %s, 1.0, %s' % (v(MB + 16 + i), v(MB + 16 + i)))
    stats8(S, A, AC, Tm, 0)
    S('v_mul_f32 %s, %s, %s' % (v(AC), v(AC), v(AC + 1)))
    S.stamp(5)
    for i in range(8): S('v_fma_f32 %s, %s, %s, -%s' % (v(A + i), v(A + i), v(AC + 1), v(AC)))
    for i in range(8): S('v_fma_f32 %s, %s, %s, %s' % (v(A + i), v(A + i), v(MB + 16 + i), v(MB + 8 + i)))
    for i in range(4): S('v_cvt_pk_bf16_f32 %s, %s, %s' % (v(PB + 4 + i), v(A + 2 * i), v(A + 2 * i + 1)))
    unpack(S, A, PB + 4, 4)
    S('s_mov_b32 s24, %d\ns_mov_b32 s25, %d' % (WS_H2 - WS_X, WS_HN - WS_X))
    S('buffer_store_dwordx4 %s, v5, s[20:23], s24 offen %s' % (v(PB + 4, 4), sf))
    S.stamp(6)
    stats8(S, A, AC, Tm, 1152)
    S.stamp(7)
    S('v_mul_f32 %s, %s, %s' % (v(AC), v(AC), v(AC + 1)))
    for i in range(8): S('v_fma_f32 %s, %s, %s, -%s' % (v(A + i), v(A + i), v(AC + 1), v(AC)))
    for i in range(4): S('v_cvt_pk_bf16_f32 %s, %s, %s' % (v(PB + 8 + i), v(A + 2 * i), v(A + 2 * i + 1)))
    S('buffer_store_dwordx4 %s, v5, s[20:23], s25 offen %s' % (v(PB + 8, 4), sf))
    S('L_mid_end:\ns_endpgm')
    return finish(name, S, 96) + ('grid=(256,1,1) block=(640,1,1) lds=%d' % (MO + 10240),)

if __name__ == '__main__':
    for g in (gen_mod, gen_ln1, gen_mid):
        r = g(); print(r[0], r[3])
```

```python
WS_MOD  = 0x0
WS_CS3  = 0x3C00
WS_ST   = 0x8000
WS_MP   = 0x28000
WS_H    = 0x40000
WS_O    = 0x400000
WS_PART = 0x2000000
WS_X    = 0x3000000
WS_H2   = 0x3300000
WS_HN   = 0x3600000
WS_G    = 0x3900000
WS_X1   = 0x3C00000
WS_U    = 0x4000000
WS_STAMP= 0xF000000
ACT = 2048 * 640 * 2
KARG = dict(x=0, k=8, v=16, wq=24, wo=32, bx=40, w1=48, w2=56, w3=64, w4=72, c=80, wmod=88, out=96, dbg=104, ws=112)
WS_TWO = 0x5000000
WS_TW4 = 0x5800000
WS_TW1 = 0x5A00000
WS_TW2 = 0x5B00000
WS_TW3 = 0x5C00000
import os
if os.environ.get('REUSE', '0') == '1':
    WS_X, WS_H2, WS_HN, WS_G, WS_X1, WS_U = (WS_O + 0x280000 * i for i in range(6))
```

```python
import sys
from asmlib import *
import gen_small, gen_gemm2, gen_attn16
from layout import *
def add_timeline(k, idx):
    name, text, desc, errs, launch = k
    lines = text.split('\n')
    out = []; started = False
    head = '''    s_memrealtime s[92:93]
    s_memtime s[94:95]
    s_load_dwordx2 s[88:89], s[0:1], 112
    v_readfirstlane_b32 s83, v0
    s_mov_b32 s82, s2
    s_waitcnt lgkmcnt(0)'''
    tail = '''    s_waitcnt vmcnt(0) lgkmcnt(0)
    s_memrealtime s[96:97]
    s_memtime s[98:99]
    s_add_u32 s84, s88, %d
    s_addc_u32 s85, s89, 0
    s_mov_b32 s86, 0x10000
    s_mov_b32 s87, 0x20000
    s_lshl_b32 s82, s82, 7
    s_lshr_b32 s83, s83, 2
    s_min_u32 s83, s83, 112
    s_add_u32 s82, s82, s83
    s_waitcnt lgkmcnt(0)
    v_mov_b32 v0, s92
    v_mov_b32 v1, s96
    v_mov_b32 v2, s94
    v_mov_b32 v3, s98
    v_mov_b32 v4, s82
    buffer_store_dwordx4 v[0:3], v4, s[84:87], 0 offen
    s_add_u32 s84, s84, 0x100000
    s_addc_u32 s85, s85, 0
    s_nop 1
    v_mov_b32 v0, s64
    v_mov_b32 v1, s66
    v_mov_b32 v2, s68
    v_mov_b32 v3, s70
    v_lshlrev_b32 v4, 1, v4
    buffer_store_dwordx4 v[0:3], v4, s[84:87], 0 offen
    s_nop 1
    v_mov_b32 v0, s72
    v_mov_b32 v1, s74
    v_mov_b32 v2, s76
    v_mov_b32 v3, s78
    buffer_store_dwordx4 v[0:3], v4, s[84:87], 0 offen offset:16
    s_endpgm''' % (WS_STAMP + 0x100000 + idx * 0x10000)
    head += ''.join('\n    s_mov_b32 s%d, s94' % (64 + 2 * i) for i in range(8))
    endlab = None
    for i, l in enumerate(lines):
        st = l.strip()
        if not started and st.startswith('s_cbranch_scc1'):
            endlab = st.split()[1]
            out.append('    s_cbranch_scc1 %s_x' % endlab); out.append(head); started = True; continue
        if st == 's_endpgm': out.append(tail); continue
        out.append(l)
    out.append('%s_x:\n    s_endpgm\n' % endlab)
    return name, '\n'.join(out), desc.replace('next_free_sgpr 96', 'next_free_sgpr 102'), errs, launch

def build(opts=None, stamp=False):
    opts = opts or {}
    STAMPS[0] = bool(opts.get('tl'))
    ks = [gen_small.gen_mod(opts), gen_small.gen_ln1(opts)]
    n, text, desc, lds, errs = gen_attn16.gen(opts=opts.get('attn'), **({'thr': opts['thr']} if 'thr' in opts else {}))
    ks.append((n, text, desc, errs, 'grid=(256,1,1) block=(256,1,1) lds=%d' % lds))
    ks += [gen_gemm2.gen('oproj', opts), gen_small.gen_mid(opts)] + [gen_gemm2.gen(k, opts) for k in ('g1', 'g2', 'g3', 'g4')]
    sf = opts.get('sf')
    if sf:
        import re
        ks = [(k[0], re.sub(r'(buffer_store_[^\n]*)', lambda m_: m_.group(1) + ' ' + sf, k[1])) + k[2:] for k in ks]
    if opts.get('tl'):
        ks = [add_timeline(k, i) for i, k in enumerate(ks)]
    ref = open('adaLN_cond__mha_block_cached__mixer_s_mlp__prompt.s.ref').read().split('\n')
    head = [l for l in ref if l.startswith(';') and '@launch' not in l and 'Override' not in l and 'grid=ceil' not in l]
    out = '\n'.join(head) + '\n'
    if opts.get('empty'):
        ks.append(('nop_kernel', '    s_endpgm\n', kernel_desc('nop_kernel', 8, 8), [], 'grid=(256,1,1) block=(256,1,1) lds=0'))
    order = opts.get('order', list(range(9)))
    for k in ks: assert not k[3], k[3][:5]
    for i in order:
        k = ks[i]
        out += '; @launch kernel=%s %s\n' % (k[0], k[4])
    out += '.amdgcn_target "amdgcn-amd-amdhsa--gfx950"\n.text\n'
    for k in ks: out += kernel_head(k[0]) + k[1]
    out += '.section .rodata,"a"\n'
    for k in ks: out += '.p2align 6\n' + k[2]
    return out
if __name__ == '__main__':
    fn = sys.argv[1] if len(sys.argv) > 1 else 'adaLN_cond__mha_block_cached__mixer_s_mlp__prompt.s'
    opts = eval(sys.argv[2]) if len(sys.argv) > 2 else {}
    open(fn, 'w').write(build(opts))
    print('written', fn)
```
